```python
import torch

def _softmax(x, axis=-1):
    return torch.softmax(x, dim=axis)
def _gelu(x):
    return torch.nn.functional.gelu(x, approximate="tanh")
def _silu(x):
    return torch.nn.functional.silu(x)
def _sigmoid(x):
    return torch.sigmoid(x)
def _layernorm(x, axis=-1, eps=1e-5):
    m = x.mean(dim=axis, keepdim=True)
    v = x.var(dim=axis, keepdim=True, unbiased=False)
    return (x - m) / torch.sqrt(v + eps)
def _scatter_add(tgt, idx, src, axis=0):
    return tgt.clone().index_add_(axis, idx, src)
def _segment_sum(src, seg, n):
    out = torch.zeros((n,) + src.shape[1:], dtype=src.dtype)
    return out.index_add_(0, seg, src)
def _pad(x, pw):
    flat = tuple(v for pair in reversed(pw) for v in pair)
    return torch.nn.functional.pad(x, flat)

kernel_name = 'sequential_preLN__spectral_fnet__glu_gated_glu__prompt'

def setup_inputs():

    _w = (lambda a: (lambda t: t.to(torch.bfloat16) if t.is_floating_point() else t)(torch.as_tensor(a)))
    def _A_setup():
        B, S, D = 1, 2048, 640
        ns = torch.arange(S)[:, None] * torch.arange(S)[None, :]
        nd = torch.arange(D)[:, None] * torch.arange(D)[None, :]
        Ws_re = torch.cos(-2.0 * torch.pi * ns / S).to(float)
        Ws_im = torch.sin(-2.0 * torch.pi * ns / S).to(float)
        Wd_re = torch.cos(-2.0 * torch.pi * nd / D).to(float)
        Wd_im = torch.sin(-2.0 * torch.pi * nd / D).to(float)
        return {
            "x": _w((lambda *s: torch.randn(*s, dtype=torch.bfloat16) * 0.05)(B, S, D)),
            "dft_seq_re": _w(Ws_re),
            "dft_seq_im": _w(Ws_im),
            "dft_hid_re": _w(Wd_re),
            "dft_hid_im": _w(Wd_im),
        }
    _A_in = _A_setup()

    def _B_setup():
        B, S, D, F = 1, 2048, 640, 1536
        return {
            "x": _w((lambda *s: torch.randn(*s, dtype=torch.bfloat16) * 0.05)(B, S, D)),
            "w_gate": _w((lambda *s: torch.randn(*s, dtype=torch.bfloat16) * 1.6)(D, F)),
            "w_up": _w((lambda *s: torch.randn(*s, dtype=torch.bfloat16) * 0.8)(D, F)),
            "w_down": _w((lambda *s: torch.randn(*s, dtype=torch.bfloat16) * 0.8)(F, D)),
        }
    _B_in = _B_setup()

    return {
        "A_x": _A_in["x"],
        "A_dft_seq_re": _A_in["dft_seq_re"],
        "A_dft_seq_im": _A_in["dft_seq_im"],
        "A_dft_hid_re": _A_in["dft_hid_re"],
        "A_dft_hid_im": _A_in["dft_hid_im"],
        "B_x": _B_in["x"],
        "B_w_gate": _B_in["w_gate"],
        "B_w_up": _B_in["w_up"],
        "B_w_down": _B_in["w_down"],
    }

def reference(A_x, A_dft_seq_re, A_dft_seq_im, A_dft_hid_re, A_dft_hid_im, B_x, B_w_gate, B_w_up, B_w_down):
    def _A_ref(x, dft_seq_re, dft_seq_im, dft_hid_re, dft_hid_im):
        a = torch.einsum("bsd,ed->bse", x, dft_hid_re)
        b = torch.einsum("bsd,ed->bse", x, dft_hid_im)
        y = torch.einsum("ts,bse->bte", dft_seq_re, a) - torch.einsum("ts,bse->bte", dft_seq_im, b)
        return y

    def _B_ref(x, w_gate, w_up, w_down):
        g = torch.einsum("bsd,df->bsf", x, w_gate)
        u = torch.einsum("bsd,df->bsf", x, w_up)
        h = _sigmoid(g) * u
        return torch.einsum("bsf,fd->bsd", h, w_down)

    x = A_x
    h = x + _A_ref(_layernorm(x, axis=-1), A_dft_seq_re, A_dft_seq_im, A_dft_hid_re, A_dft_hid_im)
    h2 = h + _B_ref(_layernorm(h, axis=-1), B_w_gate, B_w_up, B_w_down)
    return h2
```

```python
NAME = "sequential_preLN__spectral_fnet__glu_gated_glu__prompt"
class Asm:
    def __init__(self):
        self.lines = []
        self.nlab = 0
    def __call__(self, s=""):
        for l in s.split("\n"):
            self.lines.append("    " + l.strip() if l.strip() and not l.strip().endswith(":") else l.strip())
    def label(self, name): self.lines.append(name + ":")
    def newlabel(self, p="L"):
        self.nlab += 1; return f"{p}_{self.nlab}"
    def text(self): return "\n".join(self.lines) + "\n"
def v(a, n=1): return f"v{a}" if n == 1 else f"v[{a}:{a+n-1}]"
def a_(a, n=1): return f"a{a}" if n == 1 else f"a[{a}:{a+n-1}]"
def s(a, n=1): return f"s{a}" if n == 1 else f"s[{a}:{a+n-1}]"
def R(r, n=1):
    return v(r, n) if r < 256 else a_(r-256, n)
def kernel_header(name):
    return f""".globl {name}
.p2align 8
.type {name},@function
{name}:
"""
def kernel_desc(name, nvgpr=512, accum=256, nsgpr=96):
    return f""".section .rodata,"a"
.p2align 6
.amdhsa_kernel {name}
  .amdhsa_next_free_vgpr {nvgpr}
  .amdhsa_next_free_sgpr {nsgpr}
  .amdhsa_accum_offset {accum}
  .amdhsa_group_segment_fixed_size 0
  .amdhsa_kernarg_size 96
  .amdhsa_user_sgpr_count 2
  .amdhsa_user_sgpr_kernarg_segment_ptr 1
  .amdhsa_system_sgpr_workgroup_id_x 1
.end_amdhsa_kernel
"""
PRE = '.amdgcn_target "amdgcn-amd-amdhsa--gfx950"\n.text\n'
```

```python
import re
REG = re.compile(r'^(-|abs\()?([vas])(\d+|\[(\d+):(\d+)\])\)?$')
def regs(op):
    op = op.strip()
    if op == "vcc": return {("s", "vcc")}
    if op in ("vcc_lo","vcc_hi"): return {("s", "vcc")}
    if op == "m0": return {("s", "m0")}
    if op in ("exec","exec_lo","exec_hi"): return {("s", "exec")}
    op = op.replace("|","")
    m = REG.match(op)
    if not m: return set()
    k = m.group(2)
    if m.group(4) is not None: return {(k, i) for i in range(int(m.group(4)), int(m.group(5))+1)}
    return {(k, int(m.group(3)))}
TRANS = ("v_exp_","v_log_","v_rcp_","v_rsq_","v_sqrt_","v_sin_","v_cos_")
class I:
    def __init__(s, line):
        s.line = line
        t = line.split(";")[0].strip()
        s.label = t.endswith(":")
        s.empty = (t == "") or t.startswith(".")
        s.w = set(); s.r = set(); s.rc = set(); s.data = set()
        s.mn = ""; s.states = 0
        if s.label or s.empty: return
        parts = t.split(None, 1)
        s.mn = mn = parts[0]
        ops = []
        if len(parts) > 1:
            ops = [o.strip() for o in parts[1].split(",")]
            last = ops[-1].split()
            s.mods = last[1:]
            ops[-1] = last[0] if last else ""
        else: s.mods = []
        s.ops = ops
        s.states = 1
        if mn == "s_nop": s.states = int(ops[0], 0) + 1
        s.mfma = mn.startswith("v_mfma")
        s.valu = mn.startswith("v_") and not s.mfma
        s.trans = mn.startswith(TRANS)
        s.dot = mn.startswith("v_dot")
        s.vmem = mn.startswith(("buffer_", "global_"))
        s.ds = mn.startswith("ds_")
        s.salu = mn.startswith("s_")
        s.lds_dma = s.vmem and ("lds" in s.mods or "load_lds" in mn)
        s.dpp = "_dpp" in mn or any(m.startswith(("row_","quad_perm")) for m in s.mods)
        R = [regs(o) for o in ops]
        allr = lambda l: set().union(*l) if l else set()
        if s.mfma:
            s.w = R[0]; s.r = R[1] | R[2]; s.rc = R[3]
            s.sgemm = mn.endswith("_f32") and ("x4_f32" in mn or "x2_f32" in mn)
            s.passes = 4 if "16x16x32" in mn else 8
            if "32x32x2_f32" in mn: s.passes = 16
        elif s.valu:
            if mn.startswith("v_permlane") and "swap" in mn or mn.startswith("v_swap"):
                s.w = R[0] | R[1]; s.r = R[0] | R[1]
            elif "_co_" in mn:
                s.w = R[0] | R[1]; s.r = allr(R[2:])
            else:
                s.w = R[0]; s.r = allr(R[1:])
                if mn.startswith(("v_fmac", "v_dot2c", "v_pk_fmac")) or s.dpp or mn.startswith("v_writelane"): s.r |= R[0]
                if mn.startswith("v_cmpx"): s.w |= {("s","exec")}
        elif s.vmem:
            if s.lds_dma: s.r = allr(R) | {("s","m0")}
            elif "load" in mn: s.w = R[0]; s.r = allr(R[1:])
            elif "store" in mn or "atomic" in mn:
                s.r = allr(R)
                s.data = R[0] if mn.startswith("buffer_") else R[1]
                if "atomic" in mn and "sc0" in s.mods: s.w = R[0]
                s.wide = "x3" in mn or "x4" in mn
        elif s.ds:
            if "read" in mn or "permute" in mn or "swizzle" in mn: s.w = R[0]; s.r = allr(R[1:])
            else: s.r = allr(R)
        elif s.salu:
            if mn.startswith(("s_cmp","s_cbranch","s_branch","s_waitcnt","s_barrier","s_nop","s_sleep","s_endpgm","s_setprio","s_bitcmp")): s.r = allr(R)
            else:
                s.w = R[0] if R else set(); s.r = allr(R[1:])
                if "saveexec" in mn: s.w |= {("s","exec")}
def vg(x): return {r for r in x if r[0] in "va"}
def sg(x): return {r for r in x if r[0] == "s"}
def need(p, c):
    n = 0
    if p.valu:
        pv = vg(p.w); ps = sg(p.w)
        if c.mfma and pv & (c.r | c.rc): n = max(n, 3 if p.dot else 2)
        if c.mfma and ("s","exec") in ps: n = max(n, 4)
        if c.valu:
            if p.trans and not c.trans and pv & c.r: n = max(n, 1)
            if p.trans and c.trans and pv & c.r: n = max(n, 1)
            if p.dot and pv & (c.r | c.w):
                if c.mn != p.mn: n = max(n, 3)
                else:
                    ab = set().union(*[regs(o) for o in c.ops[1:3]])
                    if pv & ab: n = max(n, 3)
            if c.mn.startswith(("v_readlane","v_readfirstlane")) and pv & c.r: n = max(n, 1)
            if c.mn.startswith("v_permlane") and pv & c.r: n = max(n, 2)
            if c.dpp and pv & c.r: n = max(n, 2)
            if ps & c.r: n = max(n, 4 if c.mn.startswith(("v_readlane","v_writelane")) else 2)
            if ("s","exec") in ps and (c.dpp): n = max(n, 5)
            if ("s","exec") in ps and c.mn.startswith(("v_readlane","v_readfirstlane","v_writelane","v_permlane")): n = max(n, 4)
        if (c.vmem or c.ds) and p.dot and pv & c.r: n = max(n, 3)
        if (c.vmem or c.ds) and p.trans and pv & c.r: n = max(n, 1)
        if c.vmem and ps & c.r: n = max(n, 5)
        if c.salu and ps & c.r: n = max(n, 1)
    if p.mfma:
        if p.sgemm: tab_c, tab_ab = {8: 8, 16: 16}, {8: 10, 16: 18}
        else: tab_c, tab_ab = {4: 6, 8: 10}, {4: 8, 8: 12}
        if c.mfma:
            if p.w & c.r: n = max(n, tab_ab[p.passes])
            if p.w & c.rc and not (p.w == c.rc and p.mn == c.mn): n = max(n, tab_c[p.passes])
            if p.w & c.w and not (p.w & c.rc): n = max(n, tab_c[p.passes])
        elif (c.valu or c.vmem or c.ds) and p.w & (c.r | c.w): n = max(n, tab_ab[p.passes])
        if c.valu and not p.sgemm and p.rc & c.w: n = max(n, {4: 3, 8: 7}[p.passes])
    if p.vmem and p.data and getattr(p, "wide", False) and p.data & c.w: n = max(n, 2)
    if p.salu and ("s","m0") in p.w and c.lds_dma: n = max(n, 1)
    return n
def fix(text, verbose=False):
    ins = [I(l) for l in text.split("\n")]
    out = []; added = 0
    def short(hist, c):
        d = 0; sh = 0
        for p in reversed(hist):
            if p.label or p.empty: continue
            k = need(p, c) - d
            if k > sh: sh = k
            d += p.states
            if d >= 20: break
        return sh
    labels = {}
    for c in ins:
        if c.label:
            labels[c.line.strip()[:-1]] = len(out); out.append(c); continue
        if c.empty: out.append(c); continue
        sh = short(out, c)
        if sh > 0:
            while sh > 0:
                k = min(sh, 16); out.append(I(f"    s_nop {k-1}")); sh -= k; added += k
            if verbose: print("nop before", c.line)
        out.append(c)
        if c.mn.startswith(("s_cbranch","s_branch")) and c.ops[0] in labels:
            hist = list(out); worst = 0; d = 0
            for t in out[labels[c.ops[0]]:labels[c.ops[0]]+24]:
                if t.label or t.empty: continue
                worst = max(worst, short(hist, t)); hist.append(t)
            if worst > 0:
                br = out.pop(); out.append(I(f"    s_nop {worst-1}")); out.append(br); added += worst
    pos = {c.line.strip()[:-1]: i for i, c in enumerate(out) if c.label}
    for i, c in enumerate(out):
        if not c.label and not c.empty and c.mn.startswith(("s_cbranch","s_branch")) and pos.get(c.ops[0], -1) > i:
            hist = list(out[max(0,i-24):i+1])
            for t in out[pos[c.ops[0]]:pos[c.ops[0]]+24]:
                if t.label or t.empty: continue
                if short(hist, t) > 0: print("WARNING: hazard across forward branch", c.line, "->", t.line)
                hist.append(t)
    return "\n".join(c.line for c in out), added
```

```python
import sys, struct
from asmgen import *
import hazard
V_OFF, VMU_OFF = 0, 1310720
M_OFF = 2621440; MU_OFF = M_OFF + 8192; SS_OFF = M_OFF + 16384
H_OFF = 3145728; HH_OFF = 6291456; WS_SIZE = 12582912
STAMP_OFF = 16 << 20
OOB = 0x40000000
def f2h(x): return "0x%08x" % struct.unpack("<I", struct.pack("<f", x))[0]
SC = ""
def srd(A, d, base, size):
    A(f"s_mov_b32 s{d}, s{base}\ns_mov_b32 s{d+1}, s{base+1}\ns_mov_b32 s{d+2}, {size}\ns_mov_b32 s{d+3}, 0x20000")
class Stamps:
    def __init__(s, on, kidx): s.on = on; s.n = 0; s.k = kidx
    def mark(s, A):
        if s.on: A(f"s_memrealtime s[{64+2*s.n}:{65+2*s.n}]"); s.n += 1
    def flush(s, A, wsptr):
        if not s.on: return
        A("s_waitcnt lgkmcnt(0) vmcnt(0)"); s.mark(A); A("s_waitcnt lgkmcnt(0)")
        A(f"v_lshrrev_b32 v1, 6, v0\nv_lshlrev_b32 v1, 6, v1\ns_lshl_b32 s3, s2, 8\ns_add_u32 s3, s3, {STAMP_OFF + s.k*65536}\nv_add_u32 v1, s3, v1")
        for i in range(s.n):
            A(f"v_mov_b32 v2, s{64+2*i}\nglobal_store_dword v1, v2, s[{wsptr}:{wsptr+1}] offset:{4*i}")
def interleave(A, main, fill, start=0, end=None):
    end = len(main) if end is None else end
    n = end - start; k = 0
    for i, m in enumerate(main):
        A(m)
        if start <= i < end:
            tgt = (len(fill)*(i-start+1) + n - 1)//n
            while k < tgt: A(fill[k]); k += 1
    while k < len(fill): A(fill[k]); k += 1

def common_ids(A):
    A("v_lshrrev_b32 v4, 6, v0\nv_and_b32 v1, 63, v0\nv_readfirstlane_b32 s16, v4\nv_and_b32 v2, 15, v0\nv_bfe_u32 v3, v0, 4, 2")
def rgcg(A):
    A("s_and_b32 s3, s2, 7\ns_lshr_b32 s17, s3, 1\ns_lshl_b32 s17, s17, 2\ns_lshr_b32 s18, s2, 6\ns_add_u32 s17, s17, s18")
    A("s_and_b32 s3, s3, 1\ns_lshl_b32 s3, s3, 3\ns_bfe_u32 s18, s2, 0x30003\ns_add_u32 s18, s18, s3")

def kernelA(st):
    A = Asm(); T = Stamps(st, 0)
    X, MAT, AB = 0, 81920, 133120
    T.mark(A)
    A("s_load_dwordx2 s[4:5], s[0:1], 0\ns_load_dwordx2 s[6:7], s[0:1], 88")
    A("s_cmp_ge_u32 s2, 256\ns_cbranch_scc1 A_end")
    common_ids(A)
    A("s_and_b32 s17, s2, 7\ns_lshr_b32 s3, s2, 6\ns_lshl_b32 s3, s3, 3\ns_add_u32 s17, s17, s3")
    A("s_bfe_u32 s18, s2, 0x30003")
    A("s_sub_u32 s19, 64, s17\ns_cmp_eq_u32 s17, 0\ns_cselect_b32 s19, 32, s19")
    A("s_cmp_lt_u32 s16, 2\ns_cselect_b32 s20, s17, s19\ns_mul_i32 s21, s20, 1280\ns_mul_i32 s22, s16, 20480")
    A("s_and_b32 s3, s16, 1\ns_lshl_b32 s3, s3, 4")
    A("v_lshrrev_b32 v5, 3, v1\nv_add_u32 v5, s3, v5\nv_mul_u32_u24 v5, 81920, v5")
    A("v_and_b32 v6, 7, v1\nv_xor_b32 v6, v6, v3\nv_lshl_add_u32 v5, v6, 4, v5\nv_xor_b32 v6, 64, v5\nv_add_u32 v6, 655360, v6")
    A("s_waitcnt lgkmcnt(0)")
    srd(A, 8, 4, 2621440); srd(A, 12, 6, WS_SIZE)
    for sgp in range(5):
        for sg in (sgp, sgp+5):
            for rh in range(2):
                A(f"s_add_u32 m0, s22, {X + sg*1920 + rh*1024}")
                A(f"buffer_load_dwordx4 v{5+rh}, s[8:11], s21 offen offset:{sg*128} lds")
    T.mark(A)
    FE, TC, KK, PH2 = 8, 13, 18, 23
    A("s_mul_i32 s23, s18, 40")
    A(f"v_cmp_gt_u32 vcc, 8, v2")
    A(f"v_mov_b32 v{KK}, v2\nv_add_u32 v{KK+1}, 16, v2\nv_add_u32 v24, 32, v2\nv_subrev_u32 v25, 8, v2")
    A(f"v_cndmask_b32 v{KK+2}, v25, v24, vcc\nv_add_u32 v{KK+3}, 8, v2\nv_add_u32 v{KK+4}, 24, v2")
    A(f"v_mov_b32 v24, {f2h(-0.25)}\nv_cndmask_b32 v{PH2}, v24, 0, vcc\nv_cndmask_b32 v7, 0, 1.0, vcc")
    for t in range(5): A(f"v_add_u32 v{FE+t}, s23, v{KK+t}")
    A(f"v_cmp_eq_u32 vcc, 0, v{FE}\nv_mov_b32 v24, 320\nv_cndmask_b32 v{FE}, v{FE}, v24, vcc")
    for t in range(5): A(f"v_cvt_f32_u32 v{FE+t}, v{FE+t}")
    for t in range(5): A(f"v_mul_f32 v{FE+t}, {f2h(1/640)}, v{FE+t}")
    for t in range(5): A(f"v_cos_f32 v{TC+t}, v{FE+t}")
    for t in range(5): A(f"v_add_f32 v{TC+t}, v{TC+t}, v{TC+t}")
    A(f"s_lshl_b32 s3, s16, 5\nv_lshl_add_u32 v24, v3, 3, s3\nv_cvt_f32_u32 v24, v24")
    A(f"s_mul_i32 s3, s16, 5120\ns_add_u32 s3, s3, {MAT}\nv_lshl_add_u32 v25, v1, 4, s3")
    A(f"s_mov_b32 s24, s16\ns_mov_b32 s25, {f2h(-0.25)}")
    C0, PK = 32, 72
    A("A_gen:")
    for t in range(5):
        if t < 2: A(f"v_mul_f32 v{C0+8*t}, v24, v{FE+t}")
        elif t == 2: A(f"v_fma_f32 v{C0+8*t}, v24, v{FE+t}, v{PH2}")
        else: A(f"v_fma_f32 v{C0+8*t}, v24, v{FE+t}, s25")
    for t in range(5): A(f"v_add_f32 v{C0+8*t+1}, v{C0+8*t}, v{FE+t}")
    for j in range(2):
        for t in range(5): A(f"v_cos_f32 v{C0+8*t+j}, v{C0+8*t+j}")
    for j in range(2, 8):
        for t in range(5): A(f"v_fma_f32 v{C0+8*t+j}, v{TC+t}, v{C0+8*t+j-1}, -v{C0+8*t+j-2}")
    for t in range(5):
        for j in range(4): A(f"v_cvt_pk_bf16_f32 v{PK+4*t+j}, v{C0+8*t+2*j}, v{C0+8*t+2*j+1}")
        A(f"ds_write_b128 v25, {v(PK+4*t,4)} offset:{1024*t}")
    A(f"v_add_f32 v24, {f2h(128.0)}, v24\nv_add_u32 v25, 20480, v25")
    A("s_add_u32 s24, s24, 4\ns_cmp_lt_u32 s24, 10\ns_cbranch_scc1 A_gen")
    A("s_waitcnt lgkmcnt(0)\ns_barrier")
    T.mark(A)
    A(f"v_lshlrev_b32 v25, 4, v1\nv_add_u32 v25, {MAT}, v25")
    rd = [f"ds_read_b128 {a_(4*f,4)}, v25 offset:{1024*f}" for f in range(50)]
    M1 = 96
    G = Asm()
    G("s_lshl_b32 s3, s16, 3\nv_lshrrev_b32 v32, 1, v2\nv_add_u32 v32, s3, v32")
    G("v_and_b32 v33, 1, v2")
    G("v_lshlrev_b32 v34, 9, v3\nv_add_u32 v35, s19, v34\nv_add_u32 v34, s17, v34")
    G("v_mul_u32_u24 v34, v34, v32\nv_mul_u32_u24 v35, v35, v32\nv_cvt_f32_u32 v34, v34\nv_cvt_f32_u32 v35, v35\nv_cvt_f32_u32 v36, v32\nv_cvt_f32_u32 v37, v33")
    G(f"v_mul_f32 v36, {f2h(1/32)}, v36\nv_cos_f32 v38, v36")
    G(f"s_cmp_eq_u32 s17, 0\ns_cselect_b32 s26, 0, {f2h(0.25)}\ns_cselect_b32 s27, 1.0, 0")
    G(f"v_mul_f32 v39, s26, v37")
    G(f"s_mov_b32 s28, {f2h(1/2048)}")
    G(f"v_fma_f32 v34, v34, s28, -v39\nv_fma_f32 v35, v35, s28, v39")
    G(f"v_add_f32 v38, v38, v38")
    G(f"v_fma_f32 v40, -v37, s27, 1.0\nv_subrev_f32 v41, 1.0, v37\nv_fma_f32 v41, v41, s27, 1.0")
    CC = 44
    for kk in range(4):
        ty, se = kk >> 1, kk & 1
        if ty: G(f"v_add_f32 v{CC+8*kk}, {f2h(0.25)}, v{34+se}")
        else: G(f"v_mov_b32 v{CC+8*kk}, v{34+se}")
    for kk in range(4): G(f"v_add_f32 v{CC+8*kk+1}, v{CC+8*kk}, v36")
    for j in range(2):
        for kk in range(4): G(f"v_cos_f32 v{CC+8*kk+j}, v{CC+8*kk+j}")
    for j in range(2):
        for kk in range(4): G(f"v_mul_f32 v{CC+8*kk+j}, v{CC+8*kk+j}, v{40+(kk&1)}")
    for j in range(2, 8):
        for kk in range(4): G(f"v_fma_f32 v{CC+8*kk+j}, v38, v{CC+8*kk+j-1}, -v{CC+8*kk+j-2}")
    for kk in range(4):
        for j in range(4): G(f"v_cvt_pk_bf16_f32 v{M1+4*kk+j}, v{CC+8*kk+2*j}, v{CC+8*kk+2*j+1}")
    G(f"s_lshl_b32 s3, s16, 5\ns_add_u32 s3, s3, {AB}\nv_lshl_add_u32 v42, v3, 3, s3")
    for t in range(5):
        G(f"v_and_b32 v43, 3, v{KK+t}\nv_mul_u32_u24 v43, 11, v43\nv_lshrrev_b32 v{26+t}, 2, v{KK+t}\nv_add_u32 v{26+t}, v{26+t}, v43\nv_mul_u32_u24 v{26+t}, 288, v{26+t}\nv_add_u32 v{26+t}, v{26+t}, v42")
    G("v_and_b32 v43, 8, v2\nv_lshl_add_u32 v28, v43, 4, v28")
    G("v_lshl_add_u32 v31, v33, 7, v42")
    G("v_fma_f32 v8, v37, -2.0, 1.0\nv_subrev_f32 v9, 1.0, v37")
    G(f"v_mul_u32_u24 v10, 288, v2\nv_lshl_add_u32 v10, v3, 4, v10\nv_add_u32 v10, {AB}, v10")
    G("v_lshrrev_b32 v43, 1, v2\nv_xor_b32 v43, v43, v3\nv_lshlrev_b32 v43, 4, v43\nv_lshl_add_u32 v11, v2, 7, v43\nv_add_u32 v11, s22, v11\nv_xor_b32 v12, 64, v11")
    G("s_lshl_b32 s3, s16, 8\ns_add_u32 s3, s3, s17\ns_mul_i32 s29, s3, 1280\ns_add_u32 s30, s29, 40960")
    G("s_mul_i32 s3, s18, 160\nv_mul_u32_u24 v13, 81920, v3\nv_lshl_add_u32 v43, v2, 4, s3")
    G(f"s_cmp_eq_u32 s18, 0\ns_cselect_b32 s31, {VMU_OFF}, {OOB}\ns_cselect_b32 s33, 0, {OOB}\ns_mov_b32 s32, {M_OFF}")
    G(f"v_mov_b32 v14, s31\nv_cmp_eq_u32 vcc, 10, v2\nv_cndmask_b32 v43, v43, v14, vcc\nv_mov_b32 v14, {OOB}\nv_cmp_lt_u32 vcc, 10, v2\nv_cndmask_b32 v43, v43, v14, vcc\nv_add_u32 v13, v13, v43")
    G("s_lshl_b32 s3, s17, 8\ns_add_u32 s32, s32, s3\ns_lshl_b32 s3, s16, 6\ns_add_u32 s32, s32, s3\nv_lshl_add_u32 v43, v3, 4, s33\ns_mov_b32 s33, 0x3f803f80\nv_cmp_eq_u32 vcc, 0, v2\nv_cndmask_b32 v14, v14, v43, vcc")
    G("v_mov_b32 v15, 1.0\nv_mov_b32 v16, 0\nv_mov_b32 v17, 0\nv_mov_b32 v18, 0\nv_mov_b32 v19, 0\nv_cmp_eq_u32 s[34:35], 0, v3")
    interleave(A, [l.strip() for l in G.lines], rd)
    XF = 112
    AC1, AC2 = 144, 164
    def xreads(sgp):
        b = XF + 16*(sgp & 1)
        return [f"ds_read_b128 {v(b+8*u+4*hi,4)}, v{11+u} offset:{X + (sgp+5*hi)*2048}" for u in range(2) for hi in range(2)]
    T.mark(A)
    A("s_waitcnt vmcnt(16)")
    T.mark(A)
    for l in xreads(0): A(l)
    for sgp in range(5):
        b = XF + 16*(sgp & 1)
        A("s_waitcnt lgkmcnt(0)")
        mm = []; dd = []
        for u in range(2):
            ks = 2*sgp + u
            for t in range(5):
                for hi in range(2):
                    acc = (AC2 if hi else AC1) + 4*t
                    cin = "0" if ks == 0 else v(acc,4)
                    mm.append(f"v_mfma_f32_16x16x32_bf16 {v(acc,4)}, {v(b+8*u+4*hi,4)}, {a_(20*ks+4*t,4)}, {cin}")
        for r in range(16):
            dd.append(f"v_dot2c_f32_bf16 v{16+(r&1)}, v{b+r}, v{b+r}")
            dd.append(f"v_dot2c_f32_bf16 v{18+(r&1)}, s33, v{b+r}")
        if sgp == 0:
            dd = [f"v_lshlrev_b32 v20, 16, v{b}", "v_cndmask_b32 v20, 0, v20, s[34:35]"] + dd[:4] + ["v_mfma_f32_16x16x4_f32 v[184:187], v20, v15, 0"] + dd[4:]
        if sgp < 4:
            dd = dd[:20] + [f"s_waitcnt vmcnt({12-4*sgp})"] + xreads(sgp+1) + dd[20:]
            interleave(A, mm, dd)
        else:
            dd += ["v_add_f32 v16, v16, v17", "v_add_f32 v18, v18, v19", "v_mfma_f32_16x16x4_f32 v[188:191], v18, v15, 0", "v_mfma_f32_16x16x4_f32 v[192:195], v16, v15, 0"]
            interleave(A, mm, dd, 0, 17)
    T.mark(A)
    A(f"s_mov_b32 s3, {f2h(1/640)}")
    for i in range(20): A(f"v_fma_f32 v{AC1+i}, v{AC2+i}, v8, v{AC1+i}")
    for r in range(4): A(f"v_mul_f32 v{188+r}, s3, v{188+r}")
    for r in range(4): A(f"v_fmaak_f32 v{192+r}, s3, v{192+r}, {f2h(1e-5)}" if False else f"v_mul_f32 v{192+r}, s3, v{192+r}")
    A(f"buffer_store_dwordx4 v[188:191], v14, s[12:15], s32 offen {SC}")
    for r in range(4): A(f"v_fma_f32 v{192+r}, -v{188+r}, v{188+r}, v{192+r}")
    for r in range(4): A(f"v_sub_f32 v{184+r}, v{184+r}, v{188+r}")
    for r in range(4): A(f"v_max_f32 v{192+r}, 0, v{192+r}")
    for r in range(4): A(f"v_add_f32 v{192+r}, {f2h(1e-5)}, v{192+r}")
    for r in range(4): A(f"v_rsq_f32 v{192+r}, v{192+r}")
    for r in range(4): A(f"v_mul_f32 v{184+r}, v{184+r}, v{192+r}")
    for t in (3, 4, 0, 1, 2):
        if t == 2:
            for r in range(4): A(f"v_mul_f32 v{196+r}, v{184+r}, v7")
        for r in range(4):
            if t < 2: A(f"v_fma_f32 v{AC1+4*t+r}, v{AC1+4*t+r}, v{192+r}, -v{184+r}")
            elif t == 2: A(f"v_fma_f32 v{AC1+4*t+r}, v{AC1+4*t+r}, v{192+r}, -v{196+r}")
            else: A(f"v_mul_f32 v{AC1+4*t+r}, v{AC1+4*t+r}, v{192+r}")
        A(f"v_cvt_pk_bf16_f32 v{AC2+2*t}, v{AC1+4*t}, v{AC1+4*t+1}\nv_cvt_pk_bf16_f32 v{AC2+2*t+1}, v{AC1+4*t+2}, v{AC1+4*t+3}")
        A(f"ds_write_b64 v{26+t}, {v(AC2+2*t,2)}" + (" offset:128" if t > 2 else ""))
    for r in range(4): A(f"v_mul_f32 v{184+r}, v{184+r}, v9")
    A(f"v_cvt_pk_bf16_f32 v{AC2+10}, v184, v185\nv_cvt_pk_bf16_f32 v{AC2+11}, v186, v187\nds_write_b64 v31, {v(AC2+10,2)} offset:2880")
    A("s_waitcnt lgkmcnt(0)\ns_barrier")
    BF = 32
    for t in range(4):
        for kk in range(4): A(f"ds_read_b128 {v(BF+16*t+4*kk,4)}, v10 offset:{t*11*288 + kk*64}")
    DD = 112
    for t in range(4):
        A(f"s_waitcnt lgkmcnt({12-4*t})")
        for kk in range(4):
            A(f"v_mfma_f32_16x16x32_bf16 {v(DD+4*t,4)}, {v(M1+4*kk,4)}, {v(BF+16*t+4*kk,4)}, " + ("0" if kk == 0 else v(DD+4*t,4)))
    for t in range(4): A(f"v_cvt_pk_bf16_f32 v{128+t}, v{DD+4*t}, v{DD+4*t+1}\nv_cvt_pk_bf16_f32 v{132+t}, v{DD+4*t+2}, v{DD+4*t+3}")
    A(f"buffer_store_dwordx4 v[128:131], v13, s[12:15], s29 offen {SC}\nbuffer_store_dwordx4 v[132:135], v13, s[12:15], s30 offen {SC}")
    T.mark(A)
    T.flush(A, 6)
    A("A_end:\ns_endpgm")
    return A.text(), AB + 49*288

def kernelB(st):
    A = Asm(); T = Stamps(st, 1)
    T.mark(A)
    A("s_load_dwordx2 s[4:5], s[0:1], 0\ns_load_dwordx2 s[6:7], s[0:1], 88")
    A("s_cmp_ge_u32 s2, 256\ns_cbranch_scc1 B_end")
    common_ids(A); rgcg(A)
    A("s_lshl_b32 s3, s16, 4\ns_add_u32 s19, s18, s3\ns_cmp_ge_u32 s19, 40\ns_cbranch_scc1 B_end")
    A("s_lshl_b32 s20, s17, 1\ns_cmp_ge_u32 s19, 20\ns_cselect_b32 s3, 20, 0\ns_addc_u32 s20, s20, 0\ns_sub_u32 s19, s19, s3")
    A("s_sub_u32 s21, 32, s20\ns_and_b32 s21, s21, 31")
    A("v_and_b32 v2, 31, v0\nv_bfe_u32 v3, v0, 5, 1")
    A("s_mul_i32 s22, s20, 1280\ns_lshl_b32 s3, s19, 6\ns_add_u32 s22, s22, s3\ns_add_u32 s23, s22, 1310720")
    A("v_mul_u32_u24 v5, 40960, v2\nv_lshl_add_u32 v5, v3, 5, v5")
    A("s_lshl_b32 s24, s20, 8\ns_lshl_b32 s25, s21, 8\ns_add_u32 s25, s25, 128")
    A(f"v_and_b32 v7, 1, v2\nv_cmp_eq_u32 vcc, 1, v7\nv_mov_b32 v6, s24\nv_mov_b32 v7, s25\nv_cndmask_b32 v6, v6, v7, vcc\nv_lshrrev_b32 v7, 1, v2\nv_lshl_add_u32 v6, v7, 2, v6")
    A("v_bfe_u32 v7, v2, 2, 1\nv_lshlrev_b32 v8, 4, v7\nv_lshrrev_b32 v7, 3, v2\nv_lshl_add_u32 v8, v7, 2, v8\nv_and_b32 v7, 3, v2\ns_lshl_b32 s3, s19, 5\nv_add3_u32 v8, v8, v7, s3")
    A(f"v_sub_u32 v7, 640, v8\nv_min_u32 v7, v7, v8\nv_lshlrev_b32 v7, 2, v7\nv_cmp_eq_u32 vcc, 320, v8\nv_cndmask_b32 v7, v7, 0, vcc\nv_mov_b32 v9, {VMU_OFF}\nv_cmp_eq_u32 vcc, 0, v8\nv_cndmask_b32 v7, v7, v9, vcc")
    A("v_mul_u32_u24 v8, 5120, v3\nv_add_u32 v8, v8, v7")
    A("s_cmp_ge_u32 s19, 10\ns_cselect_b32 s26, s21, s20\ns_mul_i32 s26, s26, 40960\ns_add_u32 s27, s26, 10240\ns_add_u32 s28, s26, 20480\ns_add_u32 s29, s26, 30720")
    A("s_waitcnt lgkmcnt(0)")
    srd(A, 8, 4, 2621440); srd(A, 12, 6, WS_SIZE)
    XR, VF, M2, CX = 16, 32, 48, 80
    for nt in range(2):
        for i in range(2): A(f"buffer_load_dwordx4 {v(XR+8*nt+4*i,4)}, v5, s[8:11], s{22+nt} offen offset:{16*i}")
    A(f"s_mov_b32 s3, {M_OFF}")
    for nt in range(2): A(f"buffer_load_dword v{10+nt}, v6, s[12:15], s3 offen offset:{64*nt} {SC}")
    for ks in range(4):
        for jj in range(4): A(f"buffer_load_dword v{VF+4*ks+jj}, v8, s[12:15], s{26+ks} offen offset:{1280*jj} {SC}")
    T.mark(A)
    A("s_cmp_eq_u32 s20, 0\ns_cselect_b32 s3, 64, 63\nv_sub_u32 v7, s3, v2\ns_cmp_ge_u32 s19, 10\ns_cselect_b64 vcc, -1, 0\nv_cndmask_b32 v7, v2, v7, vcc\nv_cvt_f32_u32 v7, v7")
    A(f"v_mul_f32 v12, {f2h(1/64)}, v7\nv_lshlrev_b32 v13, 2, v3\nv_cvt_f32_u32 v13, v13\nv_mul_f32 v13, v13, v12\nv_mul_f32 v14, 0.5, v7\nv_cos_f32 v14, v14\nv_cmp_eq_u32 vcc, 0, v3\nv_mul_f32 v15, {f2h(5.0)}, v12")
    for ks in range(4):
        for jj in range(4):
            A(f"v_cos_f32 v112, v13\nv_sin_f32 v113, -v13")
            if ks == 0 and jj == 0: A("v_cndmask_b32 v113, v113, v14, vcc")
            A(f"v_add_f32 v13, v13, v{15 if jj == 3 else 12}")
            A(f"v_cvt_pk_bf16_f32 v{M2+4*ks+jj}, v112, v113")
    for i in range(16):
        if i & 1: A(f"v_xor_b32 v{M2+16+i}, 0x80008000, v{M2+i}")
        else: A(f"v_mov_b32 v{M2+16+i}, v{M2+i}")
    A("v_lshrrev_b32 v7, 4, v2\nv_mul_u32_u24 v9, 20480, v7\nv_lshl_add_u32 v9, v3, 9, v9\nv_and_b32 v12, 15, v2\nv_lshl_add_u32 v9, v12, 4, v9")
    A(f"s_mul_i32 s30, s20, 80\ns_add_u32 s30, s30, s19\ns_lshl_b32 s30, s30, 10\ns_add_u32 s30, s30, {H_OFF}\ns_add_u32 s31, s30, 40960")
    A("v_lshlrev_b32 v12, 3, v12\nv_lshl_add_u32 v12, v7, 2, v12\nv_lshl_add_u32 v12, v3, 7, v12")
    A(f"s_mul_i32 s32, s20, 20\ns_add_u32 s32, s32, s19\ns_lshl_b32 s32, s32, 8\ns_add_u32 s32, s32, {SS_OFF}")
    A(f"s_add_u32 s33, s24, {MU_OFF}\ns_cmp_eq_u32 s19, 0\ns_cselect_b32 s3, 0, {OOB}\nv_lshl_add_u32 v13, v1, 2, s3")
    A("s_waitcnt vmcnt(16)")
    for nt in range(2):
        for i in range(8):
            A(f"v_lshlrev_b32 v{CX+16*nt+2*i}, 16, v{XR+8*nt+i}\nv_and_b32 v{CX+16*nt+2*i+1}, 0xffff0000, v{XR+8*nt+i}")
        A(f"v_mov_b32 v{14+nt}, v{CX+16*nt}")
        for i in range(16): A(f"v_sub_f32 v{CX+16*nt+i}, v{CX+16*nt+i}, v{10+nt}")
    T.mark(A)
    for ks in range(4):
        A(f"s_waitcnt vmcnt({12-4*ks})")
        for nt in range(2): A(f"v_mfma_f32_32x32x16_bf16 {v(CX+16*nt,16)}, {v(VF+4*ks,4)}, {v(M2+16*nt+4*ks,4)}, {v(CX+16*nt,16)}")
    T.mark(A)
    for nt in range(2):
        for i in range(2):
            for j in range(4): A(f"v_cvt_pk_bf16_f32 v{XR+8*nt+4*i+j}, v{CX+16*nt+8*i+2*j}, v{CX+16*nt+8*i+2*j+1}")
            A(f"buffer_store_dwordx4 {v(XR+8*nt+4*i,4)}, v9, s[12:15], s{30+nt} offen offset:{256*i} {SC}")
    for nt in range(2): A(f"v_mul_f32 v{10+nt}, v{CX+16*nt}, v{CX+16*nt}\nv_sub_f32 v{14+nt}, v{14+nt}, v{CX+16*nt}")
    for i in range(1, 16):
        for nt in range(2): A(f"v_fmac_f32 v{10+nt}, v{CX+16*nt+i}, v{CX+16*nt+i}")
    A("v_permlane32_swap_b32 v14, v15\nv_permlane32_swap_b32 v10, v11\nv_add_f32 v10, v10, v11")
    A(f"buffer_store_dword v10, v12, s[12:15], s32 offen {SC}\nbuffer_store_dword v14, v13, s[12:15], s33 offen {SC}")
    T.mark(A)
    T.flush(A, 6)
    A("B_end:\ns_endpgm")
    return A.text(), 0

def kernelC(st):
    A = Asm(); T = Stamps(st, 2)
    T.mark(A)
    A("s_load_dwordx4 s[4:7], s[0:1], 48\ns_load_dwordx2 s[36:37], s[0:1], 88")
    A("s_cmp_ge_u32 s2, 256\ns_cbranch_scc1 C_end")
    common_ids(A); rgcg(A)
    A("s_lshl_b32 s20, s17, 3\ns_lshl_b32 s3, s16, 1\ns_add_u32 s20, s20, s3")
    A(f"s_mul_i32 s21, s20, 20480\ns_add_u32 s21, s21, {H_OFF}\ns_add_u32 s22, s21, 20480")
    A(f"s_mul_i32 s23, s20, 48\ns_mul_i32 s3, s18, 3\ns_add_u32 s23, s23, s3\ns_lshl_b32 s23, s23, 10\ns_add_u32 s23, s23, {HH_OFF}\ns_add_u32 s24, s23, 49152")
    A("v_lshlrev_b32 v5, 4, v1")
    A("s_and_b32 s3, s16, 1\ns_lshl_b32 s19, s3, 4\nv_lshrrev_b32 v6, 2, v1\nv_add_u32 v6, s19, v6\nv_mul_u32_u24 v6, 3072, v6")
    A("v_and_b32 v7, 3, v1\nv_and_b32 v8, 2, v3\nv_xor_b32 v7, v7, v8\nv_lshl_add_u32 v6, v7, 4, v6")
    A("s_mul_i32 s25, s18, 192\ns_lshl_b32 s26, s16, 10")
    A(f"s_lshr_b32 s27, s20, 2\ns_mul_i32 s27, s27, 5120\ns_lshl_b32 s3, s3, 7\ns_add_u32 s27, s27, s3\ns_add_u32 s27, s27, {SS_OFF}")
    A("v_mul_u32_u24 v7, 1280, v3\nv_lshl_add_u32 v7, v2, 3, v7")
    A("v_lshrrev_b32 v8, 2, v2\nv_lshl_add_u32 v8, v3, 3, v8\nv_lshlrev_b32 v8, 6, v8\nv_and_b32 v9, 3, v2\nv_lshl_add_u32 v8, v9, 3, v8\nv_and_b32 v9, 1, v3\nv_lshl_add_u32 v8, v9, 5, v8\nv_xor_b32 v9, 32, v8")
    A("s_waitcnt lgkmcnt(0)")
    A("s_cmp_lt_u32 s16, 2\ns_cselect_b32 s4, s4, s6\ns_cselect_b32 s5, s5, s7")
    srd(A, 8, 4, 1966080); srd(A, 12, 36, WS_SIZE)
    HF, ACC, SSR, TMP = 96, 32, 10, 20
    def dma(blk):
        p, ks = divmod(blk, 20)
        return [f"s_add_u32 m0, s26, {(blk % 40)*4096}", f"s_add_u32 s3, s25, {ks*98304 + p*64}", f"buffer_load_dwordx4 v6, s[8:11], s3 offen lds"]
    def hld(ks):
        r = []
        if ks % 4 == 0 and ks: r.append("s_add_u32 s21, s21, 4096\ns_add_u32 s22, s22, 4096")
        for nt in range(2): r.append(f"buffer_load_dwordx4 {v(HF+8*ks+4*nt,4)}, v5, s[12:15], s{21+nt} offen offset:{1024*(ks%4)} {SC}")
        return r
    for ks in range(20):
        for l in dma(ks) + hld(ks): A(l)
    T.mark(A)
    NB = 3
    win = [0]
    def reads(blk):
        slot = blk % 40; r = []
        w = slot // 16
        if w != win[0]:
            d = (w - win[0]) * 65536
            r.append(f"v_add_u32 v8, {d & 0xffffffff}, v8"); r.append(f"v_add_u32 v9, {d & 0xffffffff}, v9"); win[0] = w
        for mat in range(2):
            for t in range(2):
                for rdx in range(2):
                    r.append(f"ds_read_b64_tr_b16 {a_(16*(blk%NB)+8*mat+4*t+2*rdx,2)}, v{8+t} offset:{(slot%16)*4096+mat*2048+rdx*256}")
        return r
    def mfmas(blk):
        p, ks = divmod(blk, 20); r = []
        for mat in range(2):
            for t in range(2):
                for nt in range(2):
                    acc = ACC + 32*(p & 1) + 16*mat + 8*t + 4*nt
                    r.append(f"v_mfma_f32_16x16x32_bf16 {v(acc,4)}, {a_(16*(blk%NB)+8*mat+4*t,4)}, {v(HF+8*ks+4*nt,4)}, " + ("0" if ks == 0 else v(acc,4)))
        return r
    def epilogue(p):
        r = []
        for nt in range(2):
            for t in range(2):
                g = ACC + 32*(p & 1) + 8*t + 4*nt; u = g + 16
                for i in range(4): r.append(f"v_mul_f32 v{g+i}, v{g+i}, v{SSR+nt}")
                for i in range(4): r.append(f"v_exp_f32 v{g+i}, v{g+i}")
                for i in range(4): r.append(f"v_fma_f32 v{g+i}, v{g+i}, v{SSR+2+nt}, v{SSR+2+nt}")
                for i in range(4): r.append(f"v_rcp_f32 v{g+i}, v{g+i}")
                for i in range(4): r.append(f"v_mul_f32 v{g+i}, v{g+i}, v{u+i}")
                for i in range(2): r.append(f"v_cvt_pk_bf16_f32 v{TMP+4*nt+2*t+i}, v{g+2*i}, v{g+2*i+1}")
            r.append(f"buffer_store_dwordx4 {v(TMP+4*nt,4)}, v5, s[12:15], s{23+nt} offen offset:{1024*p} {SC}")
        return r
    stat_ld = [f"buffer_load_dwordx2 {v(SSR+2*i,2)}, v7, s[12:15], s27 offen offset:{256*i} {SC}" for i in range(5)]
    def stat_calc():
        r = ["v_mov_b32 v31, 1.0"]
        for i in range(1, 5):
            for nt in range(2): r.append(f"v_add_f32 v{SSR+nt}, v{SSR+nt}, v{SSR+2*i+nt}")
        r += ["s_nop 1"]
        for nt in range(2): r.append(f"v_mfma_f32_16x16x4_f32 {v(TMP+4*nt,4)}, v31, v{SSR+nt}, 0")
        return r
    def stat_fin():
        r = [f"s_mov_b32 s3, {f2h(1/640)}", f"v_mov_b32 v31, {f2h(1e-5)}"]
        for nt in range(2): r.append(f"v_fma_f32 v{SSR+2+nt}, v{TMP+4*nt}, s3, v31")
        for nt in range(2): r.append(f"v_rsq_f32 v{SSR+nt}, v{SSR+2+nt}")
        for nt in range(2): r.append(f"v_mul_f32 v{SSR+2+nt}, v{SSR+2+nt}, v{SSR+nt}")
        for nt in range(2): r.append(f"v_mul_f32 v{SSR+nt}, {f2h(-1.4426950408889634)}, v{SSR+nt}")
        return r
    issued = 60
    def wait_for(nth):
        A(f"s_waitcnt vmcnt({min(63, issued - nth)})")
    wait_for(12); A("s_barrier")
    T.mark(A)
    for l in reads(0) + reads(1): A(l)
    for blk in range(60):
        p, ks = divmod(blk, 20)
        fill = []
        nxt = blk + 2
        pre = []
        if p == 0 and nxt < 20 and nxt % 4 == 0:
            pre = [f"s_waitcnt vmcnt({min(63, issued - 3*(nxt+4))})", "s_barrier"]
        if nxt == 20: pre = ["s_waitcnt vmcnt(0)", "s_barrier"]
        if nxt == 40: pre = ["s_waitcnt vmcnt(0)", "s_barrier"]
        if nxt < 60: fill = pre + reads(nxt)
        extra = []
        if p == 0 and 2 <= ks < 12:
            extra = dma(20 + 2*(ks-2)) + dma(21 + 2*(ks-2)); issued += 2
        if p == 0 and ks == 12: extra = stat_ld; issued += 5
        if blk == 19: extra = stat_calc()
        if blk == 20: extra = ["s_barrier"]
        if blk == 21: extra = stat_fin()
        if p == 1 and 1 <= ks < 11: extra += dma(40 + 2*(ks-1)) + dma(41 + 2*(ks-1))
        if p >= 1 and 2 <= ks < 17:
            ep = epilogue(p-1); n = len(ep); extra += ep[n*(ks-2)//15: n*(ks-1)//15]
        A(f"s_waitcnt lgkmcnt({8 if blk < 59 else 0})")
        mm = mfmas(blk)
        if pre: interleave(A, mm, fill + extra)
        else:
            mix = []
            e = list(extra); f = list(fill)
            while e or f:
                if f: mix.append(f.pop(0))
                if e: mix.append(e.pop(0))
            interleave(A, mm, mix)
    T.mark(A)
    for l in epilogue(2): A(l)
    T.mark(A)
    T.flush(A, 36)
    A("C_end:\ns_endpgm")
    return A.text(), 163840

def kernelD(st):
    A = Asm(); T = Stamps(st, 3)
    T.mark(A)
    A("s_load_dwordx4 s[4:7], s[0:1], 64\ns_load_dwordx2 s[36:37], s[0:1], 88")
    A("s_cmp_ge_u32 s2, 256\ns_cbranch_scc1 D_end")
    common_ids(A); rgcg(A)
    A("s_lshl_b32 s20, s17, 1\ns_lshr_b32 s3, s18, 3\ns_add_u32 s20, s20, s3\ns_and_b32 s19, s18, 7")
    A("s_mul_i32 s21, s19, 160\ns_mul_i32 s3, s16, 491520\ns_add_u32 s22, s21, s3\ns_mul_i32 s23, s16, 40960")
    for i in range(4):
        A(f"s_xor_b32 s3, s16, {i}\ns_lshl_b32 s{24+i}, s20, 2\ns_add_u32 s{24+i}, s{24+i}, s3\ns_mul_i32 s{24+i}, s{24+i}, 49152\ns_mul_i32 s3, s16, 12288\ns_add_u32 s{24+i}, s{24+i}, s3\ns_add_u32 s{24+i}, s{24+i}, {HH_OFF}")
    A("v_lshlrev_b32 v5, 4, v1")
    for i in range(5):
        A(f"v_add_u32 v4, {64*i}, v1\nv_mul_u32_u24 v{6+i}, 6554, v4\nv_lshrrev_b32 v{6+i}, 16, v{6+i}")
        A(f"v_mul_u32_u24 v12, 10, v{6+i}\nv_sub_u32 v12, v4, v12\nv_lshlrev_b32 v12, 4, v12")
        if i < 3: A(f"v_mul_u32_u24 v{13+i}, 40960, v{6+i}\nv_add_u32 v{13+i}, v{13+i}, v12")
        A(f"v_mul_u32_u24 v{6+i}, 1280, v{6+i}\nv_add_u32 v{6+i}, v{6+i}, v12")
    A(f"v_mov_b32 v4, {OOB}\nv_cmp_gt_u32 vcc, 32, v1\nv_cndmask_b32 v15, v4, v15, vcc")
    A("v_lshrrev_b32 v11, 2, v1\nv_mul_u32_u24 v11, 160, v11\nv_and_b32 v12, 3, v1\nv_lshl_add_u32 v11, v12, 3, v11\nv_add_u32 v11, s23, v11")
    A("v_lshrrev_b32 v12, 1, v3\nv_lshlrev_b32 v12, 8, v12\nv_lshl_add_u32 v12, v2, 4, v12\nv_and_b32 v4, 1, v3\nv_lshl_add_u32 v12, v4, 3, v12\nv_lshlrev_b32 v16, 2, v2")
    A(f"s_lshl_b32 s28, s20, 2\ns_add_u32 s28, s28, s16\ns_lshl_b32 s29, s28, 6\ns_add_u32 s29, s29, {MU_OFF}\ns_mul_i32 s28, s28, 20480\ns_mul_i32 s3, s19, 2560\ns_add_u32 s28, s28, s3\ns_add_u32 s28, s28, {H_OFF}")
    A("s_mul_i32 s30, s20, 1280\ns_mul_i32 s3, s16, 655360\ns_add_u32 s30, s30, s3\ns_add_u32 s30, s30, s21")
    A("s_waitcnt lgkmcnt(0)")
    srd(A, 8, 4, 1966080); srd(A, 12, 36, WS_SIZE); srd(A, 40, 6, 2621440)
    ACC, RES, WF = 32, 20, 112
    for j in range(5): A(f"buffer_load_dwordx2 {v(RES+2*j,2)}, v12, s[12:15], s28 offen offset:{512*j} {SC}")
    A(f"buffer_load_dword v17, v16, s[12:15], s29 offen {SC}")
    order = [3*cc + p for p in range(3) for cc in range(4)]
    def loads(st_):
        kf = order[st_]; r = [f"s_add_u32 s3, s22, {kf*40960}"]
        for i in range(5):
            r.append(f"s_add_u32 m0, s23, {(st_%8)*5120 + i*1024}"); r.append("s_nop 0")
            r.append(f"buffer_load_dwordx4 v{6+i}, s[8:11], s3 offen lds")
        for i in range(4):
            r.append(f"s_add_u32 s3, s{24+i}, {kf*1024}")
            r.append(f"buffer_load_dwordx4 {a_(16*st_+4*i,4)}, v5, s[12:15], s3 offen {SC}")
        return r
    for s_ in range(6):
        for l in loads(s_): A(l)
    T.mark(A)
    A("s_waitcnt vmcnt(54)")
    for j in range(5):
        for i in range(2):
            A(f"v_lshlrev_b32 v{ACC+16*j+2*i}, 16, v{RES+2*j+i}\nv_and_b32 v{ACC+16*j+2*i+1}, 0xffff0000, v{RES+2*j+i}")
        for i in range(4): A(f"v_add_f32 v{ACC+16*j+i}, v{ACC+16*j+i}, v17")
    def reads(st_):
        return [f"ds_read_b64_tr_b16 {v(WF+20*(st_&1)+4*j+2*rdx,2)}, v11 offset:{(st_%8)*5120+rdx*2560+j*32}" for j in range(5) for rdx in range(2)]
    issued = 6
    A("s_waitcnt vmcnt(45)")
    T.mark(A)
    for l in reads(0): A(l)
    for s_ in range(12):
        A("s_waitcnt lgkmcnt(0)")
        mm = []
        for j in range(5):
            for i in range(4):
                acc = ACC + 16*j + 4*i
                mm.append(f"v_mfma_f32_16x16x32_bf16 {v(acc,4)}, {v(WF+20*(s_&1)+4*j,4)}, {a_(16*s_+4*i,4)}, " + ("0" if s_ == 0 and i else v(acc,4)))
        fill = []
        if issued < 12: fill += loads(issued); issued += 1
        if s_ < 11: fill += [f"s_waitcnt vmcnt({9*(issued-s_-2)})"] + reads(s_+1)
        interleave(A, mm, fill, 0, 16)
    T.mark(A)
    A("v_add_u32 v18, s23, v5")
    for i in range(1, 4):
        for j in range(5): A(f"ds_write_b128 v18, {v(ACC+16*j+4*i,4)} offset:{(i-1)*5120+j*1024}")
    for i in range(1, 4): A(f"s_xor_b32 s3, s16, {i}\ns_mul_i32 s3, s3, 40960\nv_add_u32 v{20+i}, s3, v5")
    A("v_mul_u32_u24 v19, 160, v2\nv_lshl_add_u32 v19, v3, 3, v19\nv_add_u32 v19, s23, v19")
    A("s_waitcnt lgkmcnt(0)\ns_barrier")
    for j in range(5):
        for i in range(1, 4): A(f"ds_read_b128 {v(ACC+16*j+4*i,4)}, v{20+i} offset:{(i-1)*5120+j*1024}")
    for j in range(5):
        A(f"s_waitcnt lgkmcnt({12-3*j+j})")
        b = ACC + 16*j
        for r in range(4): A(f"v_add_f32 v{b+r}, v{b+r}, v{b+4+r}")
        for r in range(4): A(f"v_add_f32 v{b+8+r}, v{b+8+r}, v{b+12+r}")
        for r in range(4): A(f"v_add_f32 v{b+r}, v{b+r}, v{b+8+r}")
        A(f"v_cvt_pk_bf16_f32 v{b}, v{b}, v{b+1}\nv_cvt_pk_bf16_f32 v{b+1}, v{b+2}, v{b+3}")
        A(f"ds_write_b64 v19, {v(b,2)} offset:{16384+32*j}")
    A("s_waitcnt lgkmcnt(0)")
    for i in range(3): A(f"ds_read_b128 {v(WF+4*i,4)}, v18 offset:{16384+1024*i}")
    for i in range(3):
        A(f"s_waitcnt lgkmcnt({2-i})\nbuffer_store_dwordx4 {v(WF+4*i,4)}, v{13+i}, s[40:43], s30 offen")
    T.mark(A)
    T.flush(A, 36)
    A("D_end:\ns_endpgm")
    return A.text(), 163840

def build(st=False, extra_empty=0):
    ks = [("pa_kernel", kernelA), ("pb_kernel", kernelB), ("pc_kernel", kernelC), ("pd_kernel", kernelD)]
    hdr = ""; body = PRE; desc = ""
    for name, fn in ks:
        txt, lds = fn(st)
        txt, n = hazard.fix(txt)
        hdr += f"; @launch kernel={name} grid=(256,1,1) block=(256,1,1) lds={lds}\n"
        body += kernel_header(name) + txt + "\n"
        desc += kernel_desc(name)
    if extra_empty:
        for i in range(extra_empty): hdr += "; @launch kernel=pe_kernel grid=(256,1,1) block=(256,1,1) lds=0\n"
        body += kernel_header("pe_kernel") + "    s_endpgm\n"; desc += kernel_desc("pe_kernel", 8, 8, 16)
    return hdr + body + desc
if __name__ == "__main__":
    open("k/m1.s", "w").write(build(False))
    open("k/m1_st.s", "w").write(build(True))
    open("k/m1_e2.s", "w").write(build(False, 2))
```

```python
from asmgen import *
import struct
def f2h(x): return "0x%08x" % struct.unpack("<I", struct.pack("<f", x))[0]
class Cnt:
    def __init__(s, name, mx): s.name = name; s.mx = mx; s.ops = []; s.done = 0
    def add(s, tag, opt): s.ops.append((tag, opt))
    def wait(s, tag, opt):
        idx = max(i for i, (t, o) in enumerate(s.ops) if t == tag)
        if idx < s.done: return None
        n = sum(1 for (t, o) in s.ops[idx+1:] if o is None or o == opt)
        s.done = idx + 1
        return min(n, s.mx)
    def all(s): s.done = len(s.ops)
def cost(it):
    t = it if isinstance(it, str) else (it[1] if it[0] in ("vm", "ds") else "")
    if not isinstance(it, str) and it[0] == "seq": return sum(cost(x) for x in it[1])
    if t.startswith(("v_exp", "v_rcp", "v_rsq", "v_cos", "v_sin", "v_permlane", "v_mfma")): return 2
    return 1
class Prog(Asm):
    def __init__(p):
        super().__init__(); p.vmc = Cnt("vmcnt", 63); p.dsc = Cnt("lgkmcnt", 15); p.opt = None; p.tail = []
    def vm(p, t, tag="_"): p(t); p.vmc.add(tag, p.opt)
    def ds(p, t, tag="_"): p(t); p.dsc.add(tag, p.opt)
    def wvm(p, tag):
        n = p.vmc.wait(tag, p.opt)
        if n is not None: p(f"s_waitcnt vmcnt({n})")
    def wds(p, tag):
        n = p.dsc.wait(tag, p.opt)
        if n is not None: p(f"s_waitcnt lgkmcnt({n})")
    def wds_all(p):
        if p.dsc.done < len(p.dsc.ops): p("s_waitcnt lgkmcnt(0)"); p.dsc.all()
    def wvm_all(p):
        if p.vmc.done < len(p.vmc.ops): p("s_waitcnt vmcnt(0)"); p.vmc.all()
    def begin(p, key): p.opt = key; p._sv = (p.vmc.done, p.dsc.done)
    def end(p): p.opt = None; p.vmc.done, p.dsc.done = p._sv
    def emit(p, it):
        if isinstance(it, str): p(it)
        elif it[0] == "vm": p.vm(it[1], it[2] if len(it) > 2 else "_")
        elif it[0] == "ds": p.ds(it[1], it[2] if len(it) > 2 else "_")
        elif it[0] == "wvm": p.wvm(it[1])
        elif it[0] == "wds": p.wds(it[1])
        elif it[0] == "wdsall": p.wds_all()
        elif it[0] == "call": it[1]()
        elif it[0] == "seq":
            for x in it[1]: p.emit(x)
        else: raise ValueError(it)
    def run(p, items):
        for it in items: p.emit(it)
    def weave(p, mains, streams):
        placed = []
        for si, (items, a, b) in enumerate(streams):
            tot = sum(cost(x) for x in items); acc = 0
            for k, x in enumerate(items):
                pos = a + (b - a) * acc / max(tot, 1)
                placed.append((pos, si, k, x)); acc += cost(x)
        placed.sort(key=lambda z: (z[0], z[1], z[2]))
        k = 0
        for i, m in enumerate(mains):
            p.emit(m)
            while k < len(placed) and placed[k][0] < i + 1: p.emit(placed[k][3]); k += 1
        while k < len(placed): p.emit(placed[k][3]); k += 1
def L(s): return [x.strip() for x in s.split("\n") if x.strip()]
def merge(*lists):
    pl = []
    for si, l in enumerate(lists):
        for k, x in enumerate(l): pl.append(((k + 0.5) / len(l), si, k, x))
    pl.sort(key=lambda z: z[:3])
    return [z[3] for z in pl]
```

```python
import sys
from prog import *
import hazard
V_OFF = 0; VROW = 1408
M_OFF = 1441792; SS_OFF = 1449984; H_OFF = 1613824; MU_OFF = 4235264
F1_OFF = 4243456; R2F_OFF = 4251648; PF_OFF = 4268032; E_OFF = 4300800
W2P_OFF = 4718592; HH_OFF = 6815744; WS_SIZE = 13107200
STAMP_OFF = 16 << 20
OOB = 0x40000000
RG = 40960; UP = 21504; HR = 22528; STT = 37888
ABA = 2*RG + 31744
SC = "sc1"
XS, WS, W1S, W2S, OS = "s[4:7]", "s[8:11]", "s[12:15]", "s[16:19]", "s[20:23]"
class Cfg:
    stamps = False; nx0 = 12; w1pf = True; codepf = True; outsc = ""; retry_max = 20000
def build(cfg):
    P = Prog(); nst = [0]; names = []
    def mark(name):
        if cfg.stamps: P(f"s_memrealtime s[{64+2*nst[0]}:{65+2*nst[0]}]"); nst[0] += 1; names.append(name)
    def retry(name, reissue, check):
        P(f"s_cbranch_vccnz RT_{name}"); P.label(f"BK_{name}")
        P.tail.append(f"RT_{name}:\ns_add_u32 s38, s38, 1\ns_cmp_gt_u32 s38, {cfg.retry_max}\ns_cbranch_scc1 BK_{name}\n" + "\n".join(reissue) + "\ns_waitcnt vmcnt(0)\n" + "\n".join(check) + f"\ns_cbranch_vccnz RT_{name}\ns_branch BK_{name}")
    def txt(items):
        o = []
        for it in items:
            if isinstance(it, str): o.append(it)
            elif it[0] in ("vm", "ds"): o.append(it[1])
            elif it[0] == "seq": o += txt(it[1])
            elif it[0] in ("wds", "wdsall"): o.append("s_waitcnt lgkmcnt(0)")
            elif it[0] == "wvm": o.append("s_waitcnt vmcnt(0)")
        return o
    P("s_getpc_b64 s[36:37]")
    P("s_load_dwordx2 s[4:5], s[0:1], 0\ns_load_dwordx2 s[8:9], s[0:1], 88\ns_load_dwordx4 s[24:27], s[0:1], 48\ns_load_dwordx2 s[16:17], s[0:1], 64\ns_load_dwordx2 s[20:21], s[0:1], 72")
    mark("start")
    P("s_cmp_ge_u32 s2, 256\ns_cbranch_scc1 L_end")
    P("s_bfe_u32 s30, s2, 0x30003")
    if cfg.codepf:
        P("s_lshl_b32 s3, s30, 12\nv_lshl_add_u32 v5, v0, 4, s3")
        P.vm("global_load_dwordx4 v[252:255], v5, s[36:37]")
    P("v_lshrrev_b32 v4, 6, v0\nv_and_b32 v1, 63, v0\nv_readfirstlane_b32 s28, v4\nv_and_b32 v2, 15, v0\nv_bfe_u32 v3, v0, 4, 2\nv_lshlrev_b32 v4, 4, v1")
    P("s_and_b32 s29, s2, 7\ns_lshr_b32 s3, s2, 6\ns_lshl_b32 s32, s3, 3\ns_add_u32 s29, s29, s32")
    P("s_bfe_u32 s32, s2, 0x20001\ns_lshl_b32 s32, s32, 2\ns_add_u32 s32, s32, s3")
    P("s_and_b32 s33, s2, 1\ns_lshl_b32 s33, s33, 3\ns_add_u32 s33, s33, s30")
    P("s_sub_u32 s31, 64, s29\ns_cmp_eq_u32 s29, 0\ns_cselect_b32 s31, 32, s31")
    P(f"s_cmp_lt_u32 s28, 2\ns_cselect_b32 s43, s29, s31\ns_cselect_b32 s44, 0, {OOB}\ns_mul_i32 s43, s43, 1280\ns_mul_i32 s35, s28, {RG}")
    P("s_cmp_ge_u32 s30, 5\ns_cselect_b32 s3, 5, 0\ns_sub_u32 s40, s30, s3\ns_lshl_b32 s45, s40, 6\ns_lshl_b32 s40, s40, 7")
    P("s_and_b32 s46, s28, 1\ns_lshl_b32 s46, s46, 4")
    P("v_lshrrev_b32 v11, 3, v1\nv_add_u32 v11, s46, v11\nv_mul_u32_u24 v11, 81920, v11")
    P("v_and_b32 v12, 7, v1\nv_xor_b32 v12, v12, v3\nv_lshl_add_u32 v11, v12, 4, v11\nv_xor_b32 v12, 64, v11\nv_add_u32 v12, 655360, v12")
    P("v_mov_b32 v16, -1\nv_mov_b32 v17, -1\nv_mov_b32 v18, -1\nv_mov_b32 v19, -1\nv_lshlrev_b32 v13, 4, v0\nv_add_u32 v14, s44, v13\ns_mul_i32 s47, s2, 10240\ns_add_u32 s48, s47, 4096\ns_add_u32 s49, s47, 8192\ns_mov_b32 s38, 0")
    P("s_mov_b32 s6, 2621440\ns_mov_b32 s7, 0x20000")
    P(f"s_mov_b32 s10, {WS_SIZE}\ns_mov_b32 s11, 0x20000\ns_mov_b32 s14, 1966080\ns_mov_b32 s15, 0x20000\ns_mov_b32 s18, 1966080\ns_mov_b32 s19, 0x20000\ns_mov_b32 s22, 2621440\ns_mov_b32 s23, 0x20000")
    P("s_waitcnt lgkmcnt(0)")
    P(f"s_add_u32 s36, s8, {E_OFF}\ns_addc_u32 s37, s9, 0\ns_load_dword s34, s[36:37], 0")
    P("s_cmp_lt_u32 s28, 2\ns_cselect_b32 s12, s24, s26\ns_cselect_b32 s13, s25, s27")
    P.vm(f"buffer_store_dwordx4 v[16:19], v13, {WS}, s47 offen {SC}")
    P.vm(f"buffer_store_dwordx4 v[16:19], v13, {WS}, s48 offen {SC}")
    P.vm(f"buffer_store_dwordx4 v[16:19], v14, {WS}, s49 offen {SC}", "poison")
    xd = []
    for j in range(5):
        if j: xd += L("s_add_u32 s40, s40, 128\ns_cmp_eq_u32 s40, 640\ns_cselect_b32 s40, 0, s40")
        for hi in range(2):
            for rh in range(2):
                xd.append(f"s_add_u32 m0, s35, {4096*j + 2048*hi + 1024*rh - 640*hi}")
                if hi == 0 and rh == 0: xd.append("s_add_u32 s39, s43, s40")
                xd.append(("vm", f"buffer_load_dwordx4 v{11+rh}, {XS}, s39 offen offset:{640*hi} lds", f"x{j}"))
    cut = [i for i, it in enumerate(xd) if not isinstance(it, str)][cfg.nx0-1] + 1
    P.run(xd[:cut])
    if cfg.w1pf:
        P("s_lshl_b32 s3, s2, 1\ns_lshr_b32 s44, s46, 4\ns_add_u32 s3, s3, s44\ns_mul_i32 s3, s3, 3840\nv_min_u32 v15, 29, v1\nv_lshlrev_b32 v15, 7, v15")
        P.vm(f"buffer_load_dword v252, v15, {W1S}, s3 offen")
    mark("issued")
    FE, TC, KK, PH2, MK2 = 13, 18, 23, 28, 29
    P("s_mul_i32 s3, s30, 40\nv_cmp_gt_u32 vcc, 8, v2")
    P(f"v_mov_b32 v{KK}, v2\nv_add_u32 v{KK+1}, 16, v2\nv_add_u32 v30, 32, v2\nv_subrev_u32 v31, 8, v2")
    P(f"v_cndmask_b32 v{KK+2}, v31, v30, vcc\nv_add_u32 v{KK+3}, 8, v2\nv_add_u32 v{KK+4}, 24, v2")
    P(f"v_mov_b32 v30, {f2h(-0.25)}\nv_cndmask_b32 v{PH2}, v30, 0, vcc\nv_cndmask_b32 v{MK2}, 0, 1.0, vcc")
    for t in range(5): P(f"v_add_u32 v{FE+t}, s3, v{KK+t}")
    P(f"v_cmp_eq_u32 vcc, 0, v{FE}\nv_mov_b32 v30, 320\ns_mov_b32 s3, {f2h(1/640)}\nv_cndmask_b32 v{FE}, v{FE}, v30, vcc")
    for t in range(5): P(f"v_cvt_f32_u32 v{FE+t}, v{FE+t}")
    for t in range(5): P(f"v_mul_f32 v{FE+t}, s3, v{FE+t}")
    for t in range(5): P(f"v_cos_f32 v{TC+t}, v{FE+t}")
    P(f"s_lshl_b32 s3, s28, 5\ns_add_u32 s45, s45, s3\ns_add_u32 s3, s35, {UP}\nv_add_u32 v31, s3, v4\ns_mov_b32 s44, s28\ns_mov_b32 s47, {f2h(-0.25)}")
    for t in range(5): P(f"v_add_f32 v{TC+t}, v{TC+t}, v{TC+t}")
    P("A_gen:")
    P("s_cmp_ge_u32 s45, 320\ns_cselect_b32 s3, 320, 0\ns_sub_u32 s45, s45, s3\nv_lshl_add_u32 v30, v3, 3, s45\nv_cvt_f32_u32 v30, v30\ns_add_u32 s45, s45, 128")
    def seed(t):
        c = 32 + 8*(t & 1)
        a = f"v_mul_f32 v{c}, v30, v{FE+t}" if t < 2 else f"v_fma_f32 v{c}, v30, v{FE+t}, " + (f"v{PH2}" if t == 2 else "s47")
        return [a, f"v_add_f32 v{c+1}, v{c}, v{FE+t}", f"v_cos_f32 v{c}, v{c}", f"v_cos_f32 v{c+1}, v{c+1}"]
    P.run(seed(0))
    for t in range(5):
        c = 32 + 8*(t & 1); pk = 48 + 4*(t & 1)
        if t < 4: P.run(seed(t+1))
        for j in range(2, 8): P(f"v_fma_f32 v{c+j}, v{TC+t}, v{c+j-1}, -v{c+j-2}")
        for j in range(4): P(f"v_cvt_pk_bf16_f32 v{pk+j}, v{c+2*j}, v{c+2*j+1}")
        P(f"ds_write_b128 v31, {v(pk,4)} offset:{1024*t}")
    P("v_add_u32 v31, 5120, v31\ns_add_u32 s44, s44, 4\ns_cmp_lt_u32 s44, 10\ns_cbranch_scc1 A_gen")
    MB0, MB1 = 223, 224
    P(f"v_add_u32 v{MB0}, {UP}, v4\nv_add_u32 v{MB1}, {UP+2*RG}, v4")
    P(f"s_lshl_b32 s3, s2, 5\ns_add_u32 s3, s3, {F1_OFF}\ns_cmp_eq_u32 s28, 0\ns_cselect_b32 s3, s3, {OOB}\nv_mov_b32 v225, s3")
    P("v_lshrrev_b32 v30, 1, v2\nv_xor_b32 v30, v30, v3\nv_lshlrev_b32 v30, 4, v30\nv_lshl_add_u32 v218, v2, 7, v30\nv_add_u32 v218, s35, v218\nv_xor_b32 v219, 64, v218")
    P("s_waitcnt lgkmcnt(0)\ns_mul_i32 s34, s34, 1664525\ns_add_u32 s34, s34, 1013904223\nv_mov_b32 v226, s34")
    P.wvm("poison"); P("s_barrier")
    P.vm(f"buffer_store_dword v226, v225, {WS}, 0 offen {SC}")
    mark("gen")
    def matreads(j):
        r = []
        for u in range(2):
            ks = 2*j + u
            for t in range(5):
                r.append(("ds", f"ds_read_b128 {a_(40*(j&1)+20*u+4*t,4)}, v{MB0 + ((ks>>1)&1)} offset:{(ks&1)*RG + ((ks>>2)*5+t)*1024}", f"m{j}"))
        return r
    XF, AC1, AC2, SM, QQ, ONE, M1 = 64, 96, 116, 136, 140, 144, 148
    def xreads(j):
        b = XF + 16*(j & 1)
        return [("ds", f"ds_read_b128 {v(b+8*u+4*hi,4)}, v{218+u} offset:{4096*j + 2048*hi}", f"xf{j}") for u in range(2) for hi in range(2)]
    P.run(matreads(0))
    P.run(xd[cut:])
    P("v_mov_b32 v248, 0\nv_mov_b32 v249, 0\nv_mov_b32 v250, 0\nv_mov_b32 v251, 0\nv_lshl_add_u32 v30, v3, 2, s46\nv_mul_u32_u24 v30, 81920, v30")
    for r in range(4):
        P(f"s_add_u32 s3, s43, {81920*r}")
        P.vm(f"buffer_load_short_d16_hi v{248+r}, v30, {XS}, s3 offen", "xx0")
    P(f"s_lshl_b32 s3, s28, 4\ns_add_u32 s51, s33, s3\ns_cmp_ge_u32 s51, 40\ns_cselect_b32 s53, {OOB}, 0\ns_cselect_b32 s51, 0, s51")
    P("s_lshl_b32 s50, s32, 1\ns_cmp_ge_u32 s51, 20\ns_cselect_b32 s3, 20, 0\ns_addc_u32 s50, s50, 0\ns_sub_u32 s51, s51, s3\ns_sub_u32 s52, 32, s50\ns_and_b32 s52, s52, 31")
    P("s_mul_i32 s44, s50, 1280\ns_lshl_b32 s3, s51, 6\ns_add_u32 s44, s44, s3\ns_add_u32 s45, s44, 1310720")
    P("v_and_b32 v230, 31, v0\nv_bfe_u32 v231, v0, 5, 1\nv_mul_u32_u24 v229, 40960, v230\nv_lshl_add_u32 v229, v231, 5, v229\nv_add_u32 v229, s53, v229")
    XR = 232
    for nt in range(2):
        for i in range(2): P.vm(f"buffer_load_dwordx4 {v(XR+8*nt+4*i,4)}, v229, {XS}, s{44+nt} offen offset:{16*i}", "xt")
    P("s_lshl_b32 s54, s2, 1\ns_add_u32 s54, s54, s28\ns_sub_u32 s54, s54, 2\ns_cmp_lt_u32 s28, 2\ns_cselect_b32 s54, 512, s54\ns_cmp_ge_u32 s54, 480\ns_cbranch_scc1 L_nor2a")
    P.begin("r2")
    P("s_mul_i32 s55, s54, 6554\ns_lshr_b32 s55, s55, 16\ns_mul_i32 s3, s55, 10\ns_sub_u32 s56, s54, s3")
    P("s_mul_i32 s44, s55, 21846\ns_lshr_b32 s44, s44, 16\ns_mul_i32 s3, s44, 3\ns_sub_u32 s3, s55, s3")
    P("s_mul_i32 s24, s3, 0x04040404\ns_add_u32 s24, s24, 0x03020100\ns_cmp_eq_u32 s3, 1\ns_mov_b32 s25, 0x0d0c1110\ns_cselect_b32 s25, 0x0f0e1514, s25\ns_cmp_eq_u32 s3, 2\ns_cselect_b32 s25, 0x17161312, s25")
    P("v_and_b32 v30, 56, v1\nv_lshrrev_b64 v[30:31], v30, s[24:25]\nv_and_b32 v30, 255, v30\nv_mul_u32_u24 v227, 1280, v30\nv_and_b32 v30, 7, v1\nv_lshl_add_u32 v227, v30, 4, v227")
    P(f"s_mul_i32 s44, s44, 122880\ns_lshl_b32 s3, s56, 7\ns_add_u32 s44, s44, s3\ns_sub_u32 s45, s35, {2*RG - 36864}")
    for qq in range(4):
        P(f"s_add_u32 m0, s45, {1024*qq}\ns_add_u32 s3, s44, {30720*qq}")
        P.vm(f"buffer_load_dwordx4 v227, {W2S}, s3 offen lds", "r2raw")
    P("v_lshrrev_b32 v228, 2, v2\nv_lshl_add_u32 v228, v3, 3, v228\nv_lshlrev_b32 v228, 7, v228\nv_and_b32 v30, 3, v2\nv_lshl_add_u32 v228, v30, 3, v228\nv_add_u32 v228, s45, v228")
    P.end(); P.label("L_nor2a")
    for i in range(3):
        P(f"v_add_u32 v30, {64*i}, v1\nv_mul_u32_u24 v{5+i}, 5462, v30\nv_lshrrev_b32 v{5+i}, 16, v{5+i}\nv_mul_u32_u24 v31, 12, v{5+i}\nv_sub_u32 v30, v30, v31")
        if i: P(f"v_lshrrev_b32 v31, 3, v{5+i}\nv_lshlrev_b32 v31, 1, v31\nv_sub_u32 v30, v30, v31\nv_add_u32 v31, 12, v30\nv_min_u32 v30, v30, v31")
        P(f"v_mul_u32_u24 v{5+i}, 3072, v{5+i}\nv_lshl_add_u32 v{5+i}, v30, 4, v{5+i}")
    P("s_mul_i32 s42, s46, 3072\ns_mul_i32 s3, s33, 192\ns_add_u32 s42, s42, s3\ns_and_b32 s3, s32, 3\ns_mul_i32 s3, s3, 491520\ns_add_u32 s41, s42, s3\ns_add_u32 s57, s42, 1966080")
    P(f"s_mov_b32 s3, 0x3f803f80\nv_mov_b32 v{ONE}, s3\nv_mov_b32 v{ONE+1}, s3\nv_mov_b32 v{ONE+2}, s3\nv_mov_b32 v{ONE+3}, s3")
    def w1dma(k):
        slot = k % 13; r = []
        for i in range(3):
            g = [f"s_add_u32 m0, s35, {slot*3072 + i*1024}"]
            if i == 0 and k:
                g.append("s_add_u32 s41, s41, 98304")
                if k % 5 == 0: g += L("s_cmp_eq_u32 s41, s57\ns_cselect_b32 s41, s42, s41")
            g.append(("vm", f"buffer_load_dwordx4 v{5+i}, {W1S}, s41 offen lds", f"w1_{k}"))
            r.append(("seq", g))
        return r
    G = []
    G += [("seq", L("s_lshl_b32 s3, s28, 3\nv_lshrrev_b32 v164, 1, v2\nv_add_u32 v164, s3, v164"))]
    G += L("v_and_b32 v165, 1, v2\nv_lshlrev_b32 v166, 9, v3\nv_add_u32 v167, s31, v166\nv_add_u32 v166, s29, v166")
    G += L("v_mul_u32_u24 v166, v166, v164\nv_mul_u32_u24 v167, v167, v164\nv_cvt_f32_u32 v166, v166\nv_cvt_f32_u32 v167, v167\nv_cvt_f32_u32 v168, v164\nv_cvt_f32_u32 v169, v165")
    G += L(f"v_mul_f32 v168, {f2h(1/32)}, v168\nv_cos_f32 v170, v168")
    G += [("seq", L(f"s_cmp_eq_u32 s29, 0\ns_cselect_b32 s44, 0, {f2h(0.25)}\ns_cselect_b32 s45, 1.0, 0"))]
    G += L(f"v_mul_f32 v171, s44, v169\ns_mov_b32 s47, {f2h(1/2048)}\nv_fma_f32 v166, v166, s47, -v171\nv_fma_f32 v167, v167, s47, v171\nv_add_f32 v170, v170, v170")
    G += L("v_fma_f32 v172, -v169, s45, 1.0\nv_subrev_f32 v216, 1.0, v169\nv_fma_f32 v173, v216, s45, 1.0")
    CC = 176
    for kk in range(4):
        G.append(f"v_add_f32 v{CC+8*kk}, {f2h(0.25)}, v{166+(kk&1)}" if kk >> 1 else f"v_mov_b32 v{CC+8*kk}, v{166+(kk&1)}")
    for kk in range(4): G.append(f"v_add_f32 v{CC+8*kk+1}, v{CC+8*kk}, v168")
    for j in range(2):
        for kk in range(4): G.append(f"v_cos_f32 v{CC+8*kk+j}, v{CC+8*kk+j}")
    for j in range(2):
        for kk in range(4): G.append(f"v_mul_f32 v{CC+8*kk+j}, v{CC+8*kk+j}, v{172+(kk&1)}")
    for j in range(2, 8):
        for kk in range(4): G.append(f"v_fma_f32 v{CC+8*kk+j}, v170, v{CC+8*kk+j-1}, -v{CC+8*kk+j-2}")
    for kk in range(4):
        for j in range(4): G.append(f"v_cvt_pk_bf16_f32 v{M1+4*kk+j}, v{CC+8*kk+2*j}, v{CC+8*kk+2*j+1}")
    G += [("seq", L(f"s_lshl_b32 s3, s28, 5\ns_add_u32 s3, s3, {ABA}\nv_lshl_add_u32 v174, v3, 3, s3"))]
    for t in range(5):
        G += L(f"v_and_b32 v175, 3, v{KK+t}\nv_lshrrev_b32 v{208+t}, 2, v{KK+t}\nv_mad_u32_u24 v{208+t}, v175, 11, v{208+t}\nv_mul_u32_u24 v{208+t}, 160, v{208+t}\nv_add_u32 v{208+t}, v{208+t}, v174")
    G += L(f"v_and_b32 v175, 8, v2\nv_mul_u32_u24 v175, {RG//8}, v175\nv_add_u32 v210, v210, v175\nv_mul_u32_u24 v213, {RG}, v165\nv_add_u32 v213, v213, v174")
    G += L("v_fma_f32 v214, v169, -2.0, 1.0\nv_mov_b32 v222, 1.0")
    G += L(f"v_mul_u32_u24 v217, 160, v2\nv_lshl_add_u32 v217, v3, 4, v217\nv_add_u32 v217, {ABA}, v217")
    G += [("seq", L(f"s_lshl_b32 s3, s28, 8\ns_add_u32 s3, s3, s29\ns_mul_i32 s58, s3, {VROW}\ns_mul_i32 s3, s30, 160\ns_add_u32 s58, s58, s3\ns_add_u32 s59, s58, {32*VROW}"))]
    G += L(f"v_mul_u32_u24 v220, {64*VROW}, v3\nv_lshl_add_u32 v220, v2, 4, v220\nv_mov_b32 v175, {OOB}")
    G += [("seq", L("s_cmp_eq_u32 s30, 7\ns_cselect_b32 s3, 11, 10\nv_cmp_gt_u32 vcc, s3, v2\nv_lshlrev_b32 v221, 4, v3\nv_lshlrev_b32 v225, 5, v0\nv_cndmask_b32 v220, v175, v220, vcc"))]
    G += [("seq", L("v_add_u32 v215, s30, v2\nv_cmp_eq_u32 vcc, 0, v215\ns_lshl_b32 s3, s29, 8\ns_lshl_b32 s60, s28, 6\ns_add_u32 s60, s60, s3\nv_cndmask_b32 v221, v175, v221, vcc"))]
    G += L(f"s_add_u32 s60, s60, {M_OFF}\nv_lshlrev_b32 v215, 2, v3\nv_sub_u32 v215, v2, v215")
    G += [f"v_cmp_eq_u32 s[{24+2*r}:{25+2*r}], {r}, v215" for r in range(2)] + [f"v_cmp_eq_u32 s[{44+2*r}:{45+2*r}], {2+r}, v215" for r in range(2)]
    G += ["v_mov_b32 v215, v214"]
    ng = len(G); gparts = [G[ng*j//4: ng*(j+1)//4] for j in range(4)]
    f1ld = [f"s_mov_b32 s3, {F1_OFF}", ("vm", f"buffer_load_dword v226, v225, {WS}, s3 offen {SC}", "f1")]
    f1ck = ["v_cmp_ne_u32 vcc, s34, v226"]
    P.wvm("x0"); mark("x0arr")
    P.run(xreads(0))
    slots = [[0], [1], [2, 3], [4], [5, 6]]
    RR = 56
    for j in range(5):
        b = XF + 16*(j & 1); mm = []
        for f in range(4):
            first = j == 0 and f == 0
            mm.append(f"v_mfma_f32_16x16x32_bf16 {v(QQ,4)}, {v(b+4*f,4)}, {v(b+4*f,4)}, " + ("0" if first else v(QQ,4)))
            mm.append(f"v_mfma_f32_16x16x32_bf16 {v(SM,4)}, {v(b+4*f,4)}, {v(ONE,4)}, " + ("0" if first else v(SM,4)))
        for u in range(2):
            for t in range(5):
                for hi in range(2):
                    acc = (AC2 if hi else AC1) + 4*t
                    mm.append(f"v_mfma_f32_16x16x32_bf16 {v(acc,4)}, {v(b+8*u+4*hi,4)}, {a_(40*(j&1)+20*u+4*t,4)}, " + ("0" if j == 0 and u == 0 else v(acc,4)))
        P.wds(f"xf{j}"); P.wds(f"m{j}")
        dm = sum((w1dma(k) for k in slots[j]), [])
        if j < 4:
            st = [(matreads(j+1), 0, 14), ([("wvm", f"x{j+1}")] + xreads(j+1), 18, 22), (dm, 1, 16), (gparts[j], 0, 28)]
        else:
            c640 = f2h(1/640)
            s1 = [f"v_cndmask_b32 v30, 0, v{QQ}, s[24:25]", f"v_cndmask_b32 v30, v30, v{QQ+1}, s[26:27]", f"v_cndmask_b32 v30, v30, v{QQ+2}, s[44:45]", f"v_cndmask_b32 v30, v30, v{QQ+3}, s[46:47]"]
            s1 += [f"v_mul_f32 v{SM+r}, {c640}, v{SM+r}" for r in range(2)] + [f"v_mfma_f32_16x16x4_f32 {v(RR,4)}, v30, v222, 0"] + [f"v_mul_f32 v{SM+r}, {c640}, v{SM+r}" for r in range(2, 4)]
            s1 += [("wvm", "xx0")] + [f"v_sub_f32 v{248+r}, v{248+r}, v{SM+r}" for r in range(4)] + [f"v_mul_f32 v{QQ+r}, v{SM+r}, v{SM+r}" for r in range(4)]
            s2 = [f"s_mov_b32 s61, {c640}"] + [f"v_fma_f32 v{RR+r}, v{RR+r}, s61, -v{QQ+r}" for r in range(4)] + [f"v_max_f32 v{RR+r}, 0, v{RR+r}" for r in range(4)]
            s2 += [f"v_add_f32 v{RR+r}, {f2h(1e-5)}, v{RR+r}" for r in range(4)] + [f"v_rsq_f32 v{RR+r}, v{RR+r}" for r in range(4)]
            st = [([("seq", f1ld)] + dm, 0, 11), (s1, 11, 19), (s2, 19, 28)]
        P.weave(mm, st)
    mark("main")
    for r in range(0, 4, 2): P(f"v_pk_mul_f32 v[{248+r}:{249+r}], v[{248+r}:{249+r}], v[{RR+r}:{RR+r+1}]")
    for r in range(0, 4, 2): P(f"v_pk_mul_f32 v[{252+r}:{253+r}], v[{RR+r}:{RR+r+1}], v[214:215]")
    for r in range(4): P(f"v_mul_f32 v{32+r}, v{248+r}, v{MK2}")
    for t in range(5):
        a1 = AC1 + 4*t; a2 = AC2 + 4*t
        for r in range(0, 4, 2):
            if t < 3:
                cr = 248 if t < 2 else 32
                P(f"v_pk_fma_f32 v[{a1+r}:{a1+r+1}], v[{a1+r}:{a1+r+1}], v[{RR+r}:{RR+r+1}], v[{cr+r}:{cr+r+1}] neg_lo:[0,0,1] neg_hi:[0,0,1]")
            else: P(f"v_pk_mul_f32 v[{a1+r}:{a1+r+1}], v[{a1+r}:{a1+r+1}], v[{RR+r}:{RR+r+1}]")
        for r in range(0, 4, 2): P(f"v_pk_fma_f32 v[{a1+r}:{a1+r+1}], v[{a2+r}:{a2+r+1}], v[{252+r}:{253+r}], v[{a1+r}:{a1+r+1}]")
        P(f"v_cvt_pk_bf16_f32 v{36+2*t}, v{a1}, v{a1+1}\nv_cvt_pk_bf16_f32 v{37+2*t}, v{a1+2}, v{a1+3}")
        P.ds(f"ds_write_b64 v{208+t}, {v(36+2*t,2)}" + (f" offset:{RG}" if t > 2 else ""))
    for r in range(4): P(f"v_mul_f32 v{248+r}, v{248+r}, v216")
    P("v_cvt_pk_bf16_f32 v46, v248, v249\nv_cvt_pk_bf16_f32 v47, v250, v251"); P.ds("ds_write_b64 v213, v[46:47] offset:1600")
    P.wvm("f1"); P.run(f1ck); retry("f1", txt(f1ld), f1ck)
    P.wds_all(); P("s_barrier")
    mark("ab")
    BF, DD = 32, 96
    for t in range(4):
        for kk in range(4): P.ds(f"ds_read_b128 {v(BF+16*t+4*kk,4)}, v217 offset:{t*1760 + (kk&1)*64 + (kk>>1)*RG}", f"bf{t}")
        if t == 0: P.vm(f"buffer_store_dwordx4 {v(SM,4)}, v221, {WS}, s60 offen {SC}")
    for t in range(4):
        P.wds(f"bf{t}")
        for kk in range(4): P(f"v_mfma_f32_16x16x32_bf16 {v(DD+4*t,4)}, {v(M1+4*kk,4)}, {v(BF+16*t+4*kk,4)}, " + ("0" if kk == 0 else v(DD+4*t,4)))
    for t in range(4): P(f"v_cvt_pk_bf16_f32 v{112+t}, v{DD+4*t}, v{DD+4*t+1}\nv_cvt_pk_bf16_f32 v{116+t}, v{DD+4*t+2}, v{DD+4*t+3}")
    P.vm(f"buffer_store_dwordx4 v[112:115], v220, {WS}, s58 offen {SC}"); P.vm(f"buffer_store_dwordx4 v[116:119], v220, {WS}, s59 offen {SC}")
    mark("vst")
    P(f"s_add_u32 s3, s2, s28\ns_cmp_eq_u32 s3, 0\ns_cselect_b32 s3, {E_OFF}, {OOB}\nv_mov_b32 v30, s3\nv_mov_b32 v23, s34")
    P.vm(f"buffer_store_dword v23, v30, {WS}, 0 offen {SC}")
    P("s_cmp_ge_u32 s54, 480\ns_cbranch_scc1 L_nor2b"); P.begin("r2")
    P.wvm("r2raw")
    for i in range(4):
        for rd in range(2): P.ds(f"ds_read_b64_tr_b16 {v(32+4*i+2*rd,2)}, v228 offset:{512*rd + 32*i}", f"r2f{i}")
    P(f"s_mul_i32 s3, s55, 10\ns_add_u32 s3, s3, s56\ns_lshl_b32 s3, s3, 12\ns_add_u32 s3, s3, {W2P_OFF}")
    for i in range(4):
        P.wds(f"r2f{i}"); P.vm(f"buffer_store_dwordx4 {v(32+4*i,4)}, v4, {WS}, s3 offen offset:{1024*i} {SC}")
    P.end(); P.label("L_nor2b")
    P(f"v_lshrrev_b32 v30, 1, v3\nv_mul_u32_u24 v8, {RG}, v30\nv_and_b32 v30, 1, v3\nv_lshrrev_b32 v31, 2, v2\nv_lshl_add_u32 v31, v30, 3, v31\nv_mul_u32_u24 v31, 192, v31\nv_add_u32 v8, v8, v31")
    P("v_and_b32 v31, 1, v2\nv_lshl_add_u32 v8, v31, 3, v8\ns_mul_i32 s3, s28, 3\nv_lshl_add_u32 v30, v30, 1, s3\nv_bfe_u32 v31, v2, 1, 1")
    P(f"v_add_u32 v24, 2, v30\nv_subrev_u32 v25, 12, v24\nv_min_u32 v24, v24, v25\nv_lshl_add_u32 v10, v24, 4, v8\nv_mul_u32_u24 v24, {2*RG}, v31\nv_add_u32 v10, v10, v24")
    P(f"v_add_u32 v24, v30, v31\nv_subrev_u32 v25, 12, v24\nv_min_u32 v24, v24, v25\nv_lshl_add_u32 v8, v24, 4, v8\nv_add_u32 v9, {2*RG}, v8")
    def trreads(k):
        return [("ds", f"ds_read_b64_tr_b16 {a_(12*k+4*t+2*rd,2)}, v{8+t} offset:{(k%13)*3072 + rd*768}", f"wf{k}") for t in range(3) for rd in range(2)]
    P.wvm("w1_6"); P.wds_all(); P("s_barrier")
    mark("X1")
    VF, M2, CX = 32, 48, 80
    Bp = []
    Bp += [("seq", L("s_lshl_b32 s44, s50, 8\ns_lshl_b32 s45, s52, 8\ns_add_u32 s45, s45, 128\nv_and_b32 v24, 1, v230\nv_cmp_eq_u32 vcc, 1, v24\nv_mov_b32 v26, s44\nv_mov_b32 v24, s45\nv_cndmask_b32 v26, v26, v24, vcc"))]
    Bp += L("v_lshrrev_b32 v24, 1, v230\nv_lshl_add_u32 v26, v24, 2, v26\nv_add_u32 v26, s53, v26")
    Bp += L("v_bfe_u32 v24, v230, 2, 1\nv_lshlrev_b32 v27, 4, v24\nv_lshrrev_b32 v24, 3, v230\nv_lshl_add_u32 v27, v24, 2, v27\nv_and_b32 v24, 3, v230\ns_lshl_b32 s45, s51, 5\nv_add3_u32 v27, v27, v24, s45")
    Bp += L("v_sub_u32 v24, 640, v27\nv_min_u32 v24, v24, v27\nv_cmp_eq_u32 vcc, 320, v27\nv_mov_b32 v25, 320\ns_nop 0\nv_cndmask_b32 v24, v24, 0, vcc\nv_cmp_eq_u32 vcc, 0, v27")
    Bp += L(f"v_mul_u32_u24 v27, {4*VROW}, v231\ns_nop 0\nv_cndmask_b32 v24, v24, v25, vcc\nv_lshl_add_u32 v27, v24, 2, v27\nv_add_u32 v27, s53, v27")
    Bp += [("seq", L(f"s_cmp_ge_u32 s51, 10\ns_cselect_b32 s46, s52, s50\ns_mul_i32 s46, s46, {32*VROW}"))]
    Bp += [("seq", L("s_cmp_eq_u32 s50, 0\ns_cselect_b32 s45, 64, 63\nv_sub_u32 v24, s45, v230\ns_cmp_ge_u32 s51, 10\ns_cselect_b64 vcc, -1, 0\nv_cndmask_b32 v24, v230, v24, vcc"))]
    Bp += L(f"v_cvt_f32_u32 v24, v24\nv_mul_f32 v12, {f2h(1/64)}, v24\nv_lshlrev_b32 v13, 2, v231\nv_cvt_f32_u32 v13, v13\nv_mul_f32 v13, v13, v12\nv_mul_f32 v14, 0.5, v24\nv_cos_f32 v14, v14\nv_cmp_eq_u32 vcc, 0, v231\nv_mul_f32 v15, {f2h(5.0)}, v12")
    for ks in range(4):
        for jj in range(4):
            Bp += L("v_cos_f32 v24, v13\nv_sin_f32 v25, -v13")
            Bp.append(f"v_add_f32 v13, v13, v{15 if jj == 3 else 12}")
            if ks == 0 and jj == 0: Bp.append("v_cndmask_b32 v25, v25, v14, vcc")
            Bp.append(f"v_cvt_pk_bf16_f32 v{M2+4*ks+jj}, v24, v25")
    for i in range(16): Bp.append(f"v_xor_b32 v{M2+16+i}, 0x80008000, v{M2+i}" if i & 1 else f"v_mov_b32 v{M2+16+i}, v{M2+i}")
    Bp += L("v_lshrrev_b32 v24, 4, v230\nv_mul_u32_u24 v28, 655360, v24\nv_lshl_add_u32 v28, v231, 9, v28\nv_lshl_add_u32 v28, v2, 4, v28\nv_add_u32 v28, s53, v28")
    Bp += [("seq", L(f"s_and_b32 s45, s50, 1\ns_lshl_b32 s45, s45, 4\ns_add_u32 s45, s45, s32\ns_mul_i32 s45, s45, 20\ns_add_u32 s45, s45, s51\ns_lshl_b32 s45, s45, 10\ns_add_u32 s58, s45, {H_OFF}\ns_add_u32 s59, s58, 1310720"))]
    Bp += [("seq", L(f"s_mul_i32 s60, s50, 20\ns_add_u32 s60, s60, s51\ns_lshl_b32 s60, s60, 8\ns_add_u32 s60, s60, {SS_OFF}\ns_add_u32 s61, s44, {MU_OFF}\ns_cmp_eq_u32 s51, 0\ns_cselect_b32 s45, s53, {OOB}\nv_lshl_add_u32 v29, v1, 2, s45\nv_lshl_add_u32 v30, v1, 2, s53"))]
    for nt in range(2):
        for i in range(8): Bp += L(f"v_lshlrev_b32 v{CX+16*nt+2*i}, 16, v{XR+8*nt+i}\nv_and_b32 v{CX+16*nt+2*i+1}, 0xffff0000, v{XR+8*nt+i}")
        Bp.append(f"v_mov_b32 v{14+nt}, v{CX+16*nt}")
    P.run(merge(sum((w1dma(k) for k in range(7, 13)), []), sum((trreads(k) for k in range(7)), []), Bp))
    mld = [f"s_mov_b32 s3, {M_OFF}"] + [("vm", f"buffer_load_dword v{12+nt}, v26, {WS}, s3 offen offset:{64*nt} {SC}", "bm") for nt in range(2)]
    mck = L("v_max_u32 v24, v12, v13\nv_cmp_eq_u32 vcc, -1, v24")
    vld = []
    for ks in range(4):
        for jj in range(4):
            if jj % 2 == 0: vld.append(f"s_add_u32 s3, s46, {(8*ks+jj)*VROW}")
            vld.append(("vm", f"buffer_load_dword v{VF+4*ks+jj}, v27, {WS}, s3 offen offset:{(jj&1)*VROW} {SC}", "bv"))
    vck = [f"v_max3_u32 v24, v{VF}, v{VF+1}, v{VF+2}"] + [f"v_max3_u32 v24, v24, v{VF+i}, v{VF+i+1}" for i in range(3, 15, 2)] + [f"v_max_u32 v24, v24, v{VF+15}", "v_cmp_eq_u32 vcc, -1, v24"]
    P.run(mld + vld)
    mark("vld")
    P.wvm("bm"); P.run(mck); retry("bm", txt(mld), mck)
    for nt in range(2):
        for i in range(16): P(f"v_sub_f32 v{CX+16*nt+i}, v{CX+16*nt+i}, v{12+nt}")
    P.wvm("bv"); P.run(vck); retry("bv", txt(vld), vck)
    mark("varr")
    for nt in range(2):
        for ks in range(4): P(f"v_mfma_f32_32x32x16_bf16 {v(CX+16*nt,16)}, {v(VF+4*ks,4)}, {v(M2+16*nt+4*ks,4)}, {v(CX+16*nt,16)}")
    for nt in range(2):
        for i in range(2):
            for j in range(4): P(f"v_cvt_pk_bf16_f32 v{XR+8*nt+4*i+j}, v{CX+16*nt+8*i+2*j}, v{CX+16*nt+8*i+2*j+1}")
            P.vm(f"buffer_store_dwordx4 {v(XR+8*nt+4*i,4)}, v28, {WS}, s{58+nt} offen offset:{256*i} {SC}")
    P(f"v_sub_f32 v14, v14, v{CX}\nv_sub_f32 v15, v15, v{CX+16}\nv_permlane32_swap_b32 v14, v15")
    P.vm(f"buffer_store_dword v14, v29, {WS}, s61 offen {SC}", "hst")
    P(f"s_lshl_b32 s3, s54, 5\ns_add_u32 s3, s3, {R2F_OFF}\ns_cmp_lt_u32 s54, 480\ns_cselect_b32 s3, s3, {OOB}\nv_mov_b32 v24, s3")
    P.vm(f"buffer_store_dword v23, v24, {WS}, 0 offen {SC}")
    mark("hst")
    P.wds_all(); P("s_barrier")
    Sq = [f"v_mul_f32 v{26+nt}, v{CX+16*nt}, v{CX+16*nt}" for nt in range(2)] + [f"v_fmac_f32 v{26+nt}, v{CX+16*nt+i}, v{CX+16*nt+i}" for i in range(1, 16) for nt in range(2)]
    Sq += [("seq", L("s_nop 1\nv_permlane32_swap_b32 v26, v27\nv_add_f32 v26, v26, v27"))]
    Sq += L(f"v_add_u32 v11, {HR}, v4\nv_add_u32 v12, {HR+2*RG}, v4\nv_add_u32 v15, 4096, v4\nv_lshlrev_b32 v14, 3, v2\nv_add_u32 v14, {STT}, v14")
    Sq += [("seq", L(f"s_lshl_b32 s3, s28, 8\nv_lshl_add_u32 v13, v2, 4, s3\nv_lshl_add_u32 v13, v3, 10, v13\nv_cmp_eq_u32 vcc, 3, v3\nv_mov_b32 v24, {OOB}\ns_add_u32 s43, s35, {HR}\nv_cndmask_b32 v13, v13, v24, vcc"))]
    Sq += [("seq", L(f"s_add_u32 s3, s28, s32\ns_and_b32 s3, s3, 3\ns_mul_i32 s3, s3, 5\ns_mul_i32 s44, s32, 20\ns_add_u32 s44, s44, s3\ns_lshl_b32 s44, s44, 10\ns_add_u32 s44, s44, {H_OFF}"))]
    Sq += [("seq", L(f"s_mul_i32 s45, s32, 48\ns_mul_i32 s3, s33, 3\ns_add_u32 s45, s45, s3\ns_lshl_b32 s45, s45, 10\ns_add_u32 s45, s45, {HH_OFF}"))]
    Sq += [("seq", L(f"s_mul_i32 s46, s32, 10240\ns_lshl_b32 s3, s28, 6\ns_add_u32 s46, s46, s3\ns_add_u32 s46, s46, {SS_OFF}\ns_add_u32 s47, s46, 5120\nv_mul_u32_u24 v25, 1280, v3\nv_lshl_add_u32 v25, v2, 2, v25\nv_add_u32 v22, s43, v4"))]
    d2 = sum((w1dma(k) for k in range(13, 20)), [])
    P.run(merge(d2[:14], sum((trreads(k) for k in range(7, 13)), []), Sq))
    P.wds_all(); P("s_barrier")
    P.run(d2[14:])
    P.wvm("hst"); P.vm(f"buffer_store_dword v26, v30, {WS}, s60 offen {SC}")
    mark("ssst")
    def hdma(i):
        r = [f"s_add_u32 m0, s43, {(i%3)*5120}", f"s_add_u32 s48, s44, {i*327680}"]
        r += [("vm", f"buffer_load_dwordx4 v4, {WS}, s48 offen offset:{1024*f} {SC} lds", f"h{i}") for f in range(4)]
        r += [("seq", [f"s_add_u32 m0, s43, {(i%3)*5120+4096}", "s_nop 0", ("vm", f"buffer_load_dwordx4 v15, {WS}, s48 offen {SC} lds", f"h{i}")])]
        return r
    RING, ACC, HH0, W2V = 28, 48, 72, 120
    def hchk(i):
        r = [("ds", f"ds_read_b128 {v(HH0+4*f,4)}, v22 offset:{(i%3)*5120+1024*f}", f"hc{i}") for f in range(5)] + [("wds", f"hc{i}")]
        r += [f"v_max3_u32 v24, v{HH0}, v{HH0+1}, v{HH0+2}"] + [f"v_max3_u32 v24, v24, v{HH0+k}, v{HH0+k+1}" for k in range(3, 19, 2)] + [f"v_max_u32 v24, v24, v{HH0+19}"]
        return r
    hcmp = "v_cmp_eq_u32 vcc, -1, v24"
    def hfin(i): return ("seq", [hcmp, ("call", lambda: retry(f"h{i}", txt(hdma(i)), txt(hchk(i)) + [hcmp]))])
    P.run(hdma(0) + hdma(1) + hdma(2))
    P.wvm("h0"); P.run(hchk(0) + [hfin(0)])
    P("s_barrier")
    mark("X4")
    def hread(F):
        i, k = divmod(F, 20)
        return ("ds", f"ds_read_b128 {v(RING+4*(F%5),4)}, v{11+k//10} offset:{((k//5)&1)*RG + (i%3)*5120 + (k%5)*1024}", f"hf{F}")
    def epilogue(i):
        g = ACC + 12*(i & 1); u = g + 4; x = g + 8
        gs = [g, g+1, g+2, g+3, x, x+1]; us = [u, u+1, u+2, u+3, x+2, x+3]
        r = [("wds", f"st{i}")]
        r += [f"v_mul_f32 v{a}, v{a}, v24" for a in gs[:4]] + [f"v_permlane32_swap_b32 v{x}, v{x+2}", f"v_permlane32_swap_b32 v{x+1}, v{x+3}"]
        r += [f"v_exp_f32 v{a}, v{a}" for a in gs[:2]] + [f"v_mul_f32 v{a}, v{a}, v24" for a in gs[4:]] + [f"v_exp_f32 v{a}, v{a}" for a in gs[2:]]
        r += [f"v_fma_f32 v{a}, v{a}, v25, v25" for a in gs] + [f"v_rcp_f32 v{a}, v{a}" for a in gs] + [f"v_mul_f32 v{a}, v{a}, v{b}" for a, b in zip(gs, us)]
        r += [f"v_cvt_pk_bf16_f32 v{20+k}, v{gs[2*k]}, v{gs[2*k+1]}" for k in range(3)] + [f"v_cvt_pk_bf16_f32 v{16+k}, v{gs[2*k]}, v{gs[2*k+1]}" for k in range(2)]
        r += ["v_permlane16_swap_b32 v20, v21", "v_permlane16_swap_b32 v22, v19", f"v_cvt_pk_bf16_f32 v18, v{gs[4]}, v{gs[5]}", f"s_add_u32 s49, s45, {i*786432}", "v_permlane32_swap_b32 v21, v19"]
        r += [("vm", f"buffer_store_dwordx4 v[16:19], v13, {WS}, s49 offen {SC}", f"hhst{i}")]
        return r
    def stread(i): return ("ds", f"ds_read_b64 v[24:25], v14 offset:{128*i}", f"st{i}")
    def pflag(n): return [("seq", [("wvm", f"hhst{n-1}"), f"v_add_u32 v26, {n}, v23", ("vm", f"buffer_store_dword v26, v5, {WS}, 0 offen {SC}")])]
    def w2reg(f): return v(W2V+4*f, 4) if f < 34 else (a_(240+4*(f-34), 4) if f < 38 else a_(48+4*(f-38), 4))
    def w2load(f):
        kk, j = divmod(f, 5); g = []
        if f >= 38: g += [f"s_add_u32 m0, s35, {(f-38)*1024}", f"s_add_u32 s51, s50, {kk*40960 + j*1024}"]
        elif j == 0 or j == 4: g.append(f"s_add_u32 s51, s50, {kk*40960 + (j//4)*4096}")
        if f < 38: g.append(("vm", f"buffer_load_dwordx4 {w2reg(f)}, v4, {WS}, s51 offen offset:{(j%4)*1024} {SC}", f"w2_{f}"))
        else: g.append(("vm", f"buffer_load_dwordx4 v4, {WS}, s51 offen {SC} lds", f"w2_{f}"))
        return ("seq", g)
    def hhreg(s_, kk): return v(HH0+4*kk, 4) if s_ == 0 else a_((0, 0, 136, 0)[s_] + 4*kk, 4)
    def hhload(s_):
        r = []
        for kk in range(12):
            g = [f"s_add_u32 s53, s52, {s_*2*786432 + kk*1024}"] if kk % 4 == 0 else []
            r.append(("seq", g + [("vm", f"buffer_load_dwordx4 {hhreg(s_,kk)}, v4, {WS}, s53 offen offset:{(kk%4)*1024} {SC}", f"hh{s_}_{kk}")]))
        return r
    def pfpoll(name): return [("vm", f"buffer_load_dword v27, v6, {WS}, 0 offen {SC}", name)]
    def pfchk(name, need):
        ck = [f"s_add_u32 s3, s34, {need}" if isinstance(need, int) else f"s_add_u32 s3, s34, {need}", "v_subrev_u32 v27, s3, v27", "v_cmp_lt_u32 vcc, 8, v27"]
        return [("seq", [("wvm", name)] + ck + [("call", lambda: retry(name, txt(pfpoll(name)), ck))])]
    ssld = [("vm", f"buffer_load_dword v{96+5*b+k}, v25, {WS}, s{46+b} offen offset:{256*k} {SC}", "ss") for b in range(2) for k in range(5)]
    ssck = L("v_max3_u32 v106, v96, v97, v98\nv_max3_u32 v106, v106, v99, v100\nv_max3_u32 v107, v101, v102, v103\nv_max3_u32 v107, v107, v104, v105\nv_max_u32 v106, v106, v107")
    sscmp = "v_cmp_eq_u32 vcc, -1, v106"
    sscalc = [("wvm", "ss")] + ssck + [("seq", [sscmp, ("call", lambda: retry("ss", txt(ssld), ssck + [sscmp]))])]
    sscalc += ["v_mov_b32 v107, 1.0"] + [f"v_add_f32 v{96+5*b}, v{96+5*b}, v{96+5*b+k}" for k in range(1, 5) for b in range(2)] + [f"v_mov_b32 v106, {f2h(1e-5)}", f"s_mov_b32 s49, {f2h(1/640)}"]
    sscalc += [f"v_mfma_f32_16x16x4_f32 {v(108+4*b,4)}, v107, v{96+5*b}, 0" for b in range(2)]
    ssfin = [f"v_fma_f32 v{109+4*b}, v{108+4*b}, s49, v106" for b in range(2)] + [f"v_rsq_f32 v{108+4*b}, v{109+4*b}" for b in range(2)]
    ssfin += [("seq", L("s_lshl_b32 s3, s28, 8\nv_add_u32 v107, s3, v14"))] + [f"v_mul_f32 v{109+4*b}, v{109+4*b}, v{108+4*b}" for b in range(2)] + [f"v_mul_f32 v{108+4*b}, {f2h(-1.4426950408889634)}, v{108+4*b}" for b in range(2)]
    ssfin += [("ds", f"ds_write_b64 v107, {v(108+4*b,2)} offset:{128*b}") for b in range(2)]
    Dp = [("seq", L(f"s_lshr_b32 s54, s33, 3\ns_and_b32 s55, s33, 7\ns_mul_i32 s50, s28, 491520\ns_mul_i32 s3, s55, 5120\ns_add_u32 s50, s50, s3\ns_add_u32 s50, s50, {W2P_OFF}"))]
    Dp += [("seq", L(f"s_mul_i32 s3, s55, 5\ns_lshr_b32 s3, s3, 2\ns_mul_i32 s56, s28, 120\ns_add_u32 s3, s3, s56\nv_min_u32 v116, 23, v1\nv_lshrrev_b32 v117, 1, v116\nv_and_b32 v116, 1, v116\nv_mad_u32_u24 v116, v117, 10, v116\nv_add_u32 v116, s3, v116\nv_lshlrev_b32 v116, 5, v116"))]
    r2ld = [f"s_mov_b32 s3, {R2F_OFF}", ("vm", f"buffer_load_dword v117, v116, {WS}, s3 offen {SC}", "r2f")]
    r2ck = ["v_cmp_ne_u32 vcc, s34, v117"]
    Dp += [("seq", r2ld)]
    r2fin = [("seq", [("wvm", "r2f")] + r2ck + [("call", lambda: retry("r2f", txt(r2ld), r2ck))])]
    Dq = [("seq", L(f"s_lshl_b32 s3, s32, 4\ns_add_u32 s56, s3, s33\ns_lshl_b32 s56, s56, 2\ns_add_u32 s56, s56, s28\ns_lshl_b32 s56, s56, 5\ns_add_u32 s56, s56, {PF_OFF}\nv_mov_b32 v5, s56"))]
    Dq += [("seq", L(f"s_lshl_b32 s3, s32, 11\ns_lshl_b32 s56, s28, 9\ns_add_u32 s3, s3, s56\ns_add_u32 s3, s3, {PF_OFF}\nv_lshl_add_u32 v6, v2, 5, s3"))]
    Dq += [("seq", L(f"s_lshl_b32 s3, s54, 4\ns_add_u32 s56, s3, s32\ns_mul_i32 s52, s56, 48\ns_mul_i32 s3, s28, 12\ns_add_u32 s52, s52, s3\ns_lshl_b32 s52, s52, 10\ns_add_u32 s52, s52, {HH_OFF}"))]
    Dq += [("seq", L(f"s_mul_i32 s57, s56, 20480\ns_mul_i32 s3, s55, 2560\ns_add_u32 s57, s57, s3\ns_lshl_b32 s3, s28, 6\ns_add_u32 s57, s57, s3\ns_add_u32 s57, s57, {H_OFF}"))]
    Dq += [("seq", L(f"s_lshl_b32 s56, s32, 1\ns_add_u32 s56, s56, s54\ns_lshl_b32 s58, s56, 8\ns_lshl_b32 s3, s28, 4\ns_add_u32 s58, s58, s3\ns_add_u32 s58, s58, {MU_OFF}"))]
    Dq += [("seq", L("s_mul_i32 s59, s56, 1280\ns_mul_i32 s3, s55, 160\ns_add_u32 s59, s59, s3\ns_mul_i32 s3, s28, 163840\ns_add_u32 s59, s59, s3\ns_add_u32 s60, s54, 7"))]
    Dq += L("v_min_u32 v116, 39, v1\nv_mul_u32_u24 v117, 6554, v116\nv_lshrrev_b32 v117, 16, v117\nv_mul_u32_u24 v118, 10, v117\nv_sub_u32 v116, v116, v118")
    Dq += L("v_lshlrev_b32 v7, 8, v116\nv_lshl_add_u32 v7, v117, 4, v7\nv_mul_u32_u24 v8, 40960, v117\nv_lshl_add_u32 v8, v116, 4, v8")
    Dq += [("seq", L(f"v_cmp_gt_u32 vcc, 40, v1\nv_mov_b32 v118, {OOB}\ns_mul_i32 s3, s28, {4*336}\ns_add_u32 s3, s3, {HR}\nv_cndmask_b32 v8, v118, v8, vcc\nv_mul_u32_u24 v9, 336, v117\nv_lshl_add_u32 v9, v116, 5, v9\nv_add_u32 v9, s3, v9"))]
    Dq += L("v_lshlrev_b32 v10, 2, v117")
    P.run([hread(F) for F in range(4)])
    w2sched = {1: range(0, 8), 2: range(8, 20), 3: range(20, 31), 4: range(31, 42), 5: range(42, 52), 6: range(52, 60)}
    for i in range(8):
        mm = []
        for k in range(20):
            F = 20*i + k
            for t in range(3):
                acc = ACC + 12*(i & 1) + 4*t
                m = f"v_mfma_f32_16x16x32_bf16 {v(acc,4)}, {a_(12*k+4*t,4)}, {v(RING+4*(F%5),4)}, " + ("0" if k == 0 else v(acc,4))
                pre = []
                if t == 0:
                    pre.append(("wds", f"hf{F}"))
                    if i == 0 and k >= 13: pre.append(("wds", f"wf{k}"))
                mm.append(("seq", pre + [m]))
        st = [([hread(20*i + k + 4)], 3*k, 3*k + 1) for k in range(16)]
        bar = [("wdsall",)] + ([("wvm", f"h{i+1}")] if i < 7 else []) + ["s_barrier"]
        if i < 7:
            st.append(([("seq", bar + [hread(20*i+20), hread(20*i+21)])], 51, 52)); st.append(([hread(20*i+22)], 54, 55)); st.append(([hread(20*i+23)], 57, 58))
        else: st.append(([("seq", bar)], 51, 52))
        if i + 3 < 8: st.append((hdma(i+3), 52, 60))
        if i == 0:
            st.append((ssld, 0, 6)); st.append((sum((trreads(k) for k in range(13, 20)), []), 0, 40))
            st.append(([("wvm", "h1")] + hchk(1) + [hfin(1)], 8, 24)); st.append((sscalc, 26, 38)); st.append((ssfin, 42, 50)); st.append((Dp, 53, 60))
        else:
            if i == 1: st.append(([("wvm", "h2")] + hchk(2) + [hfin(2)], 0, 10)); st.append(([stread(0)], 10, 11)); st.append((epilogue(0), 14, 50))
            else: st.append(([stread(i-1)], 0, 1)); st.append((epilogue(i-1), 4, 46))
            if i in w2sched:
                wl = [w2load(f) for f in w2sched[i]]
                if i == 1: st.append((r2fin + wl, 24, 50))
                else: st.append((wl, 2, 50))
            if i == 2: st.append((Dq, 0, 50))
            if i in (5, 7): st.append((pflag(i-1), 30, 31))
            if i == 6: st.append((pfpoll("pf1"), 36, 37))
            if i == 7:
                st.append((pfchk("pf1", 4) + hhload(0) + hhload(1), 1, 50))
                st.append((["v_add_u32 v15, s35, v4", ("wvm", "w2_59")] + [("ds", f"ds_read_b128 {w2reg(f)}, v15 offset:{(f-38)*1024}", f"w2l{f}") for f in range(38, 46)], 52, 60))
        P.weave(mm, st)
        if i in (0,): mark(f"C{i}")
    mark("C7")
    DAC = 184; T0 = HH0
    def redwrite(s_): return [("ds", f"ds_write_b128 v11, {a_(DAC+20*(s_&1)+4*j,4)} offset:{(s_&1)*5376 + 64*j}") for j in range(5)]
    def resload(s_):
        b = 28 + 8*(s_ & 1)
        return [("seq", [f"s_add_u32 s3, s57, {s_*655360}", ("vm", f"buffer_load_dwordx4 {v(b,4)}, v7, {WS}, s3 offen {SC}", f"res{s_}")]), ("vm", f"buffer_load_dword v{b+4}, v10, {WS}, s58 offen offset:{64*s_} {SC}", f"res{s_}")]
    def resprep(s_):
        b = 28 + 8*(s_ & 1); r = [("wvm", f"res{s_}")]
        for k in range(4): r += [f"v_lshlrev_b32 v{T0+32+2*k}, 16, v{b+k}", f"v_and_b32 v{T0+33+2*k}, 0xffff0000, v{b+k}"]
        return r + [f"v_add_f32 v{T0+32+k}, v{T0+32+k}, v{b+4}" for k in range(8)]
    def redread(s_): return [("ds", f"ds_read_b128 {v(T0+8*ww+4*hh,4)}, v{(9,12)[ww>>1]} offset:{(ww&1)*RG + (s_&1)*5376 + 16*hh}", f"rd{s_}_{ww}") for ww in range(4) for hh in range(2)]
    def redsum(s_, pk):
        r = []
        for ww in range(4):
            r.append(("wds", f"rd{s_}_{ww}"))
            if pk: r += [f"v_pk_add_f32 v[{T0+32+k}:{T0+33+k}], v[{T0+32+k}:{T0+33+k}], v[{T0+8*ww+k}:{T0+8*ww+k+1}]" for k in range(0, 8, 2)]
            else: r += [f"v_add_f32 v{T0+32+k}, v{T0+32+k}, v{T0+8*ww+k}" for k in range(8)]
        r += [f"v_cvt_pk_bf16_f32 v{T0+40+k}, v{T0+32+2*k}, v{T0+33+2*k}" for k in range(4)]
        r += [("seq", [f"s_add_u32 s3, s59, {s_*655360}", ("vm", f"buffer_store_dwordx4 {v(T0+40,4)}, v8, {OS}, s3 offen {cfg.outsc}")])]
        return r
    for s_ in range(4):
        mm = []
        for kk in range(12):
            for j in range(5):
                f = 5*kk + j; acc = a_(DAC+20*(s_&1)+4*j, 4); pre = []
                if j == 0: pre.append(("wvm", f"hh{s_}_{kk}"))
                if s_ == 0 and f >= 38: pre.append(("wds", f"w2l{f}"))
                mm.append(("seq", pre + [f"v_mfma_f32_16x16x32_bf16 {acc}, {w2reg(f)}, {hhreg(s_,kk)}, " + ("0" if kk == 0 else acc)]))
        st = []
        if s_ == 0:
            st.append(([stread(7)], 0, 1)); st.append((epilogue(7), 3, 32))
            st.append(([("ds", f"ds_read_b128 {w2reg(f)}, v15 offset:{(f-38)*1024}", f"w2l{f}") for f in range(46, 60)], 1, 34))
            st.append((pflag(7), 20, 21)); st.append((pfpoll("pf2"), 42, 43))
            st.append((L(f"v_mul_u32_u24 v11, 336, v2\nv_lshl_add_u32 v11, v3, 4, v11\nv_add_u32 v11, s43, v11\nv_add_u32 v12, {2*RG}, v9") + resload(0), 34, 40))
        else:
            st.append((redwrite(s_-1), 4, 14)); st.append((resprep(s_-1), 0, 18)); st.append(([("seq", [("wdsall",), "s_barrier"])] + redread(s_-1), 20, 28))
            st.append((redsum(s_-1, False), 30, 56)); st.append((resload(s_), 22, 24))
            if s_ == 1: st.append((pflag(8), 29, 30)); st.append((pfchk("pf2", 6) + hhload(2), 10, 28))
            if s_ == 2: st.append((pfpoll("pf3"), 15, 16)); st.append((pfchk("pf3", "s60") + hhload(3), 50, 60))
        P.weave(mm, st)
        if s_ == 2: mark("D2")
    mark("D3")
    P.run(resprep(3)[:9] + redwrite(3) + resprep(3)[9:] + [("wdsall",), "s_barrier"] + redread(3) + redsum(3, True))
    mark("out")
    if cfg.stamps:
        P("s_waitcnt lgkmcnt(0) vmcnt(0)"); mark("end"); P("s_waitcnt lgkmcnt(0)")
        P(f"s_lshl_b32 s3, s2, 2\ns_add_u32 s3, s3, s28\ns_lshl_b32 s3, s3, 7\ns_add_u32 s3, s3, {STAMP_OFF}\nv_mov_b32 v1, s3")
        for i in range(nst[0]): P(f"v_mov_b32 v2, s{64+2*i}\nglobal_store_dword v1, v2, s[8:9] offset:{4*i}")
        P(f"v_mov_b32 v2, s38\nglobal_store_dword v1, v2, s[8:9] offset:124")
    P("L_end:\ns_endpgm")
    for t in P.tail: P(t)
    body, nn = hazard.fix(P.text())
    K = NAME + "_kernel"
    body += f"\nL_codeend:\n.fill (33024 - (L_codeend - {K}))/4, 4, 0xbf810000\n"
    return f"; @launch grid=(256,1,1) block=(256,1,1) lds=163840\n" + PRE + kernel_header(K) + body + kernel_desc(K, 512, 256, 102), names
if __name__ == "__main__":
    c = Cfg(); t, _ = build(c); open("k/m2.s", "w").write(t)
    c.stamps = True; t, names = build(c); open("k/m2_st.s", "w").write(t); open("k/m2_st.names", "w").write(" ".join(names))
    print(len(names), names)
```
